```python
import torch

def _softmax(x, axis=-1):
    return torch.softmax(x, dim=axis)
def _gelu(x):
    return torch.nn.functional.gelu(x, approximate="tanh")
def _silu(x):
    return torch.nn.functional.silu(x)
def _sigmoid(x):
    return torch.sigmoid(x)
def _layernorm(x, axis=-1, eps=1e-5):
    m = x.mean(dim=axis, keepdim=True)
    v = x.var(dim=axis, keepdim=True, unbiased=False)
    return (x - m) / torch.sqrt(v + eps)
def _scatter_add(tgt, idx, src, axis=0):
    return tgt.clone().index_add_(axis, idx, src)
def _segment_sum(src, seg, n):
    out = torch.zeros((n,) + src.shape[1:], dtype=src.dtype)
    return out.index_add_(0, seg, src)
def _pad(x, pw):
    flat = tuple(v for pair in reversed(pw) for v in pair)
    return torch.nn.functional.pad(x, flat)

kernel_name = 'interleave_layers__gqa_block_cached__mha_block_cached__decode'

def setup_inputs():

    _w = (lambda a: (lambda t: t.to(torch.bfloat16) if t.is_floating_point() else t)(torch.as_tensor(a)))
    def _A_setup():
        B, Sq, D = 8, 1, 512
        Hq, Hkv, Sk, Dh = 32, 8, 4096, 128
        assert Hq % Hkv == 0, (Hq, Hkv)
        return {
            "x": _w((lambda *s: torch.randn(*s, dtype=torch.bfloat16) * 0.1)(B, Sq, D)),
            "k_cache": _w((lambda *s: torch.randn(*s, dtype=torch.bfloat16) * 0.8)(B, Hkv, Sk, Dh)),
            "v_cache": _w((lambda *s: torch.randn(*s, dtype=torch.bfloat16) * 6.4)(B, Hkv, Sk, Dh)),
            "wq": _w((lambda *s: torch.randn(*s, dtype=torch.bfloat16) * 0.8)(D, Hq * Dh) * (D ** -0.5)),
            "wo": _w((lambda *s: torch.randn(*s, dtype=torch.bfloat16) * 6.4)(Hq * Dh, D) * ((Hq * Dh) ** -0.5)),
        }
    _A_in = _A_setup()

    def _B_setup():
        B, Sq, D = 8, 1, 512
        H, Sk, Dh = 32, 4096, 128
        return {
            "x": _w((lambda *s: torch.randn(*s, dtype=torch.bfloat16) * 0.1)(B, Sq, D)),
            "k_cache": _w((lambda *s: torch.randn(*s, dtype=torch.bfloat16) * 1.6)(B, H, Sk, Dh)),
            "v_cache": _w((lambda *s: torch.randn(*s, dtype=torch.bfloat16) * 3.2)(B, H, Sk, Dh)),
            "wq": _w((lambda *s: torch.randn(*s, dtype=torch.bfloat16) * 1.6)(D, H * Dh) * (D ** -0.5)),
            "wo": _w((lambda *s: torch.randn(*s, dtype=torch.bfloat16) * 3.2)(H * Dh, D) * ((H * Dh) ** -0.5)),
        }
    _B_in = _B_setup()

    return {
        "A_x": _A_in["x"],
        "A_k_cache": _A_in["k_cache"],
        "A_v_cache": _A_in["v_cache"],
        "A_wq": _A_in["wq"],
        "A_wo": _A_in["wo"],
        "B_x": _B_in["x"],
        "B_k_cache": _B_in["k_cache"],
        "B_v_cache": _B_in["v_cache"],
        "B_wq": _B_in["wq"],
        "B_wo": _B_in["wo"],
    }

def reference(A_x, A_k_cache, A_v_cache, A_wq, A_wo, B_x, B_k_cache, B_v_cache, B_wq, B_wo):
    def _A_ref(x, k_cache, v_cache, wq, wo):
        B, Sq, D = x.shape
        Hq, Dh = 32, 128
        Hkv = k_cache.shape[1]
        rep = Hq // Hkv
        q = (lambda x, *d: x.permute(*d))((x @ wq).reshape(B, Sq, Hq, Dh), 0, 2, 1, 3)
        k = (lambda x, n, axis: torch.repeat_interleave(x, n, dim=axis))(k_cache, rep, axis=1)
        v = (lambda x, n, axis: torch.repeat_interleave(x, n, dim=axis))(v_cache, rep, axis=1)
        scores = torch.einsum("bhqd,bhkd->bhqk", q, k) * (Dh ** -0.5)
        p = _softmax(scores, axis=-1)
        o = torch.einsum("bhqk,bhkd->bhqd", p, v)
        return (lambda x, *d: x.permute(*d))(o, 0, 2, 1, 3).reshape(B, Sq, Hq * Dh) @ wo

    def _B_ref(x, k_cache, v_cache, wq, wo):
        B, Sq, D = x.shape
        H, Dh = 32, 128
        q = (lambda x, *d: x.permute(*d))((x @ wq).reshape(B, Sq, H, Dh), 0, 2, 1, 3)
        scores = torch.einsum("bhqd,bhkd->bhqk", q, k_cache) * (Dh ** -0.5)
        p = _softmax(scores, axis=-1)
        o = torch.einsum("bhqk,bhkd->bhqd", p, v_cache)
        return (lambda x, *d: x.permute(*d))(o, 0, 2, 1, 3).reshape(B, Sq, H * Dh) @ wo

    x = A_x
    x = x + _A_ref(_layernorm(x, axis=-1), A_k_cache, A_v_cache, A_wq, A_wo)
    x = x + _B_ref(_layernorm(x, axis=-1), B_k_cache, B_v_cache, B_wq, B_wo)
    x = x + _A_ref(_layernorm(x, axis=-1), A_k_cache, A_v_cache, A_wq, A_wo)
    x = x + _B_ref(_layernorm(x, axis=-1), B_k_cache, B_v_cache, B_wq, B_wo)
    return x
```

```python
import re

TRANS = ("v_exp_f32", "v_log_f32", "v_rcp_f32", "v_rsq_f32", "v_sqrt_f32", "v_sin_f32", "v_cos_f32")


def _regs(tok):
    tok = tok.strip()
    neg = tok.lstrip("-")
    if neg.startswith("abs(") and neg.endswith(")"):
        neg = neg[4:-1]
    tok = neg
    m = re.fullmatch(r"([vs])(\d+)", tok)
    if m:
        return [(m.group(1), int(m.group(2)))]
    m = re.fullmatch(r"([vs])\[(\d+):(\d+)\]", tok)
    if m:
        return [(m.group(1), i) for i in range(int(m.group(2)), int(m.group(3)) + 1)]
    if tok == "vcc":
        return [("s", 106), ("s", 107)]
    if tok == "exec":
        return [("s", 126), ("s", 127)]
    if tok == "m0":
        return [("s", 124)]
    return []


class Ins:
    def __init__(self, text):
        self.text = text
        t = text.split(";")[0].strip()
        self.label = t.endswith(":")
        parts = t.split(None, 1)
        self.op = parts[0] if parts else ""
        rest = parts[1] if len(parts) > 1 else ""
        ops = []
        depth = 0
        cur = ""
        for ch in rest:
            if ch == "[":
                depth += 1
            if ch == "]":
                depth -= 1
            if ch == "," and depth == 0:
                ops.append(cur.strip())
                cur = ""
            else:
                cur += ch
        if cur.strip():
            ops.append(cur.strip())
        if ops:
            last = ops[-1].split()
            ops[-1] = last[0]
            self.mods = last[1:]
        else:
            self.mods = []
        self.ops = ops
        op = self.op
        self.mfma = op.startswith("v_mfma")
        self.valu = op.startswith("v_") and not self.mfma and op != "v_nop"
        self.dpp = op.endswith("_dpp")
        self.trans = any(op.startswith(x) for x in TRANS)
        self.dot = op.startswith("v_dot")
        self.vmem = op.startswith("buffer_") or op.startswith("global_")
        self.ds = op.startswith("ds_")
        self.salu = op.startswith("s_")
        self.perml = op.startswith("v_permlane")
        self.rdlane = op.startswith("v_readlane") or op.startswith("v_readfirstlane")
        self.w = []
        self.r = []
        if self.label or not op:
            return
        R = [_regs(o) for o in ops]
        if self.valu or self.mfma:
            self.w = list(R[0]) if R else []
            for x in R[1:]:
                self.r += x
            if op.startswith("v_cmp") and not self.w:
                pass
            if op.startswith(("v_fmac", "v_dot2c", "v_mac")) or (self.dpp):
                self.r += self.w
            if self.perml:
                self.w = R[0] + R[1]
                self.r = R[0] + R[1]
            if op.startswith("v_add_co") or op.startswith("v_sub_co") or op.startswith("v_addc_co"):
                self.w = R[0] + R[1]
                self.r = sum(R[2:], [])
            if op.startswith("v_cndmask") and len(ops) == 3:
                self.r += [("s", 106), ("s", 107)]
        elif self.vmem:
            if "_load" in op and "lds" not in self.mods:
                self.w = list(R[0])
                for x in R[1:]:
                    self.r += x
            elif "atomic" in op and ("sc0" in self.mods):
                self.w = list(R[0])
                for x in R:
                    self.r += x
            else:
                for x in R:
                    self.r += x
        elif self.ds:
            if op.startswith("ds_read") or op.startswith("ds_bpermute") or op.startswith("ds_swizzle") or op.startswith("ds_permute"):
                self.w = list(R[0])
                for x in R[1:]:
                    self.r += x
            else:
                for x in R:
                    self.r += x
        elif self.salu:
            if op.startswith(("s_cmp", "s_cbranch", "s_branch", "s_waitcnt", "s_nop", "s_barrier", "s_endpgm", "s_sleep", "s_setprio")):
                for x in R:
                    self.r += x
            else:
                self.w = list(R[0]) if R else []
                for x in R[1:]:
                    self.r += x
        self.wide_store = self.vmem and ("store_dwordx4" in op or "store_dwordx3" in op)

    def states(self):
        if self.label or not self.op:
            return 0
        if self.op == "s_nop":
            return int(self.ops[0], 0) + 1
        return 1


def need(p, c):
    n = 0
    pw = set(p.w)
    cr = set(c.r)
    cw = set(c.w)
    pv = {x for x in pw if x[0] == "v"}
    ps = {x for x in pw if x[0] == "s"}
    if p.valu:
        if pv & cr:
            if c.dpp:
                n = max(n, 2)
            if c.mfma:
                n = max(n, 2)
            if c.perml:
                n = max(n, 2)
            if c.rdlane:
                n = max(n, 1)
            if p.trans and (c.valu or c.mfma) and not c.trans:
                n = max(n, 1)
            if p.trans and (c.vmem or c.ds):
                n = max(n, 1)
        if p.dot and (pv & (cr | cw)):
            if c.op == p.op:
                ab = set()
                for o in c.ops[1:3]:
                    ab |= set(_regs(o))
                if pv & ab:
                    n = max(n, 3)
            else:
                n = max(n, 3)
        if ps & cr:
            if c.valu:
                n = max(n, 2)
                if c.rdlane:
                    n = max(n, 4)
            if c.vmem:
                n = max(n, 5)
            if c.salu:
                n = max(n, 2)
    if p.mfma:
        if pv & (cr | cw):
            if c.mfma:
                d = set(_regs(c.ops[0]))
                cc = set(_regs(c.ops[3]))
                ab = set(_regs(c.ops[1])) | set(_regs(c.ops[2]))
                if pv & ab:
                    n = max(n, 8)
                if pv & cc and cc != pv:
                    n = max(n, 6)
                if pv & d and d != pv:
                    n = max(n, 6)
            else:
                n = max(n, 8)
        pc = set(_regs(p.ops[3]))
        if c.valu and (pc & cw):
            n = max(n, 3)
    if p.vmem and getattr(p, "wide_store", False):
        data = set(_regs(p.ops[0]))
        if (c.valu or c.mfma) and (data & cw):
            n = max(n, 2)
        elif data & cw:
            n = max(n, 1)
    if p.salu and ("s", 124) in pw and (c.vmem and "lds" in c.mods):
        n = max(n, 1)
    return n


def pad(lines):
    out = []
    hist = []
    for t in lines:
        i = Ins(t)
        if i.label or not i.op or i.op.startswith("."):
            out.append(t)
            if i.label:
                hist = []
            continue
        dist = 0
        req = 0
        for p in reversed(hist):
            r = need(p, i)
            if r > dist:
                req = max(req, r - dist)
            dist += p.states()
            if dist > 20:
                break
        if req > 0:
            nop = Ins("s_nop %d" % (req - 1))
            out.append("    s_nop %d" % (req - 1))
            hist.append(nop)
        out.append(t)
        hist.append(i)
        if len(hist) > 32:
            hist.pop(0)
    return out


class Asm:
    def __init__(self):
        self.L = []

    def __call__(self, s):
        for ln in s.strip("\n").split("\n"):
            ln = ln.strip()
            if ln:
                self.L.append("    " + ln)

    def label(self, name):
        self.L.append(name + ":")

    def raw(self, s):
        self.L.append(s)

    def text(self):
        return "\n".join(pad(self.L)) + "\n"
```

```python
import sys, os
sys.path.insert(0, os.path.dirname(__file__))
from asmlib import Asm

NAME = "interleave_layers__gqa_block_cached__mha_block_cached__decode"
HDR = open("cdna_kernels/%s.s.ref" % NAME).read().split("; Override launch")[0]

D_INFLIGHT = int(os.environ.get("DEPTH", "4"))
RING = 16

P_AX, P_AK, P_AV, P_AWQ, P_AWO, P_BX, P_BK, P_BV, P_BWQ, P_BWO, P_OUT, P_DBG, P_WS = [16 + 2 * i for i in range(13)]
WS_X = 0x0
WS_Q = 0x10000
WS_PART = 0x100000
WS_OP = 0x400000
WS_SIZE = 0x1000000

S_WAVE = 42
S_SELLO, S_SELHI = 43, 44
S_T0, S_T1, S_T2, S_T3 = 45, 46, 47, 48
SRD_A, SRD_B, SRD_C, SRD_D = 52, 56, 60, 64
S_M0, S_M1 = 68, 70
S_LOG2E = 72
S_SCALE = 73

LOG2E = 0x3fb8aa3b
SCALE = 0x3db504f3


def prologue(a, nwg, endlabel):
    a(f"""
    s_cmp_ge_u32 s2, {nwg}
    s_cbranch_scc1 {endlabel}
    s_load_dwordx16 s[16:31], s[0:1], 0
    s_load_dwordx8 s[32:39], s[0:1], 64
    s_load_dwordx2 s[40:41], s[0:1], 96
    v_lshrrev_b32 v1, 6, v0
    v_and_b32 v2, 63, v0
    v_readfirstlane_b32 s{S_WAVE}, v1
    s_mov_b32 s{S_SELLO}, 0x05040100
    s_mov_b32 s{S_SELHI}, 0x07060302
    s_mov_b32 s{S_LOG2E}, {LOG2E:#x}
    s_mov_b32 s{S_SCALE}, {SCALE:#x}
    s_waitcnt lgkmcnt(0)
    """)


def srd(a, r, p, off, size):
    a(f"""
    s_add_u32 s{r}, s{p}, {off}
    s_addc_u32 s{r+1}, s{p+1}, 0
    s_mov_b32 s{r+2}, {size:#x}
    s_mov_b32 s{r+3}, 0x20000
    """)


def bf16r(a, dst, src, tmp=None):
    a(f"v_cvt_pk_bf16_f32 v{dst}, v{src}, v{src}")
    a(f"v_lshlrev_b32 v{dst}, 16, v{dst}")


def wave_allreduce(a, v, t, op, bits=(0, 1, 2, 3, 4, 5)):
    for b in bits:
        if b == 0:
            a(f"{op}_dpp v{v}, v{v}, v{v} quad_perm:[1,0,3,2] row_mask:0xf bank_mask:0xf")
        elif b == 1:
            a(f"{op}_dpp v{v}, v{v}, v{v} quad_perm:[2,3,0,1] row_mask:0xf bank_mask:0xf")
        elif b == 2:
            assert 0 in bits and 1 in bits
            a(f"{op}_dpp v{v}, v{v}, v{v} row_half_mirror row_mask:0xf bank_mask:0xf")
        elif b == 3:
            assert 0 in bits and 1 in bits and 2 in bits
            a(f"{op}_dpp v{v}, v{v}, v{v} row_mirror row_mask:0xf bank_mask:0xf")
        elif b == 4:
            a(f"v_mov_b32 v{t}, v{v}")
            a(f"v_permlane16_swap_b32 v{v}, v{t}")
            a(f"{op} v{v}, v{v}, v{t}")
        elif b == 5:
            a(f"v_mov_b32 v{t}, v{v}")
            a(f"v_permlane32_swap_b32 v{v}, v{t}")
            a(f"{op} v{v}, v{v}, v{t}")


def perm_pair(a, l0, l1, tmp, u):
    for w in range(4):
        a(f"v_perm_b32 v{tmp + 4*(2*w) + u}, v{l1 + w}, v{l0 + w}, s{S_SELLO}")
        a(f"v_perm_b32 v{tmp + 4*(2*w+1) + u}, v{l1 + w}, v{l0 + w}, s{S_SELHI}")


def mfma8(a, tmp, pb, acc):
    for e in range(8):
        a(f"v_mfma_f32_16x16x32_bf16 v[{acc+4*e}:{acc+4*e+3}], v[{tmp+4*e}:{tmp+4*e+3}], v[{pb}:{pb+3}], v[{acc+4*e}:{acc+4*e+3}]")


def zero(a, base, n):
    for i in range(n):
        a(f"v_mov_b32 v{base+i}, 0")


def dump_acc(a, acc, vaddr, maskreg):
    a(f"s_mov_b64 exec, s[{maskreg}:{maskreg+1}]")
    for e in range(8):
        for r in range(4):
            a(f"ds_write_b32 v{vaddr}, v{acc+4*e+r} offset:{(8*r+e)*4}")
    a("s_mov_b64 exec, -1")


def kd(name, vgpr=256, sgpr=96):
    acc = (vgpr + 3) // 4 * 4
    return f""".amdhsa_kernel {name}
  .amdhsa_next_free_vgpr {vgpr}
  .amdhsa_next_free_sgpr {sgpr}
  .amdhsa_accum_offset {acc}
  .amdhsa_group_segment_fixed_size 0
  .amdhsa_kernarg_size 104
  .amdhsa_user_sgpr_count 2
  .amdhsa_user_sgpr_kernarg_segment_ptr 1
  .amdhsa_system_sgpr_workgroup_id_x 1
  .amdhsa_float_denorm_mode_32 3
.end_amdhsa_kernel
"""


def stage_x(a, L, vX, vT, store_x_if_h0=True):
    if L == 0:
        a(f"s_lshl_b32 s{S_T1}, s{S_T0}, 10")
        srd(a, SRD_A, P_AX, f"s{S_T1}", 1024)
        a(f"""
        v_lshlrev_b32 v{vT}, 1, v0
        buffer_load_ushort v{vX}, v{vT}, s[{SRD_A}:{SRD_A+3}], 0 offen
        s_waitcnt vmcnt(0)
        v_lshlrev_b32 v{vX}, 16, v{vX}
        """)
        return
    if L == 1:
        a(f"s_lshl_b32 s{S_T1}, s{S_T0}, 10")
        srd(a, SRD_A, P_AX, f"s{S_T1}", 1024)
    else:
        a(f"s_lshl_b32 s{S_T1}, s{S_T0}, 10")
        a(f"s_add_u32 s{S_T1}, s{S_T1}, {WS_X + (L-1)*8192}")
        srd(a, SRD_A, P_WS, f"s{S_T1}", 1024)
    a(f"s_lshl_b32 s{S_T1}, s{S_T0}, 16")
    a(f"s_add_u32 s{S_T1}, s{S_T1}, {WS_PART + (L-1)*0x80000}")
    srd(a, SRD_B, P_WS, f"s{S_T1}", 65536)
    a(f"""
    v_lshlrev_b32 v{vT}, 1, v0
    v_lshlrev_b32 v{vT+1}, 2, v0
    buffer_load_ushort v{vX}, v{vT}, s[{SRD_A}:{SRD_A+3}], 0 offen
    """)
    for h in range(32):
        if h % 2 == 0:
            a(f"s_mov_b32 s{S_T1}, {h*2048}")
        a(f"buffer_load_dword v{vT+2+h}, v{vT+1}, s[{SRD_B}:{SRD_B+3}], s{S_T1} offen offset:{(h%2)*2048}")
    a("s_waitcnt vmcnt(0)")
    for h in range(1, 32):
        a(f"v_add_f32 v{vT+2}, v{vT+2}, v{vT+2+h}")
    bf16r(a, vT + 2, vT + 2)
    a(f"v_lshlrev_b32 v{vX}, 16, v{vX}")
    a(f"v_add_f32 v{vX}, v{vX}, v{vT+2}")
    bf16r(a, vX, vX)


LDS_RED = 0
LDS_XN = 512
LDS_Q = 1536
LDS_P = 4096
LDS_ORED = 12288
LDS_TOTAL = 28672


def wg_sum(a, v, t, slot):
    wave_allreduce(a, v, t, "v_add_f32")
    a(f"""
    v_mov_b32 v{t}, s{S_WAVE}
    v_lshlrev_b32 v{t}, 2, v{t}
    ds_write_b32 v{t}, v{v} offset:{LDS_RED + slot*32}
    v_mov_b32 v{t}, 0
    s_waitcnt lgkmcnt(0)
    s_barrier
    ds_read_b128 v[{t+2}:{t+5}], v{t} offset:{LDS_RED + slot*32}
    ds_read_b128 v[{t+6}:{t+9}], v{t} offset:{LDS_RED + slot*32 + 16}
    s_waitcnt lgkmcnt(0)
    v_add_f32 v{v}, v{t+2}, v{t+3}
    v_add_f32 v{v}, v{v}, v{t+4}
    v_add_f32 v{v}, v{v}, v{t+5}
    v_add_f32 v{v}, v{v}, v{t+6}
    v_add_f32 v{v}, v{v}, v{t+7}
    v_add_f32 v{v}, v{v}, v{t+8}
    v_add_f32 v{v}, v{v}, v{t+9}
    """)


def playout_addr(a, dst, k, t):
    a(f"""
    v_lshrrev_b32 v{dst}, 5, v{k}
    v_lshlrev_b32 v{dst}, 6, v{dst}
    v_and_b32 v{t}, 3, v{k}
    v_lshl_add_u32 v{dst}, v{t}, 4, v{dst}
    v_bfe_u32 v{t}, v{k}, 2, 3
    v_lshl_add_u32 v{dst}, v{t}, 1, v{dst}
    """)


def stage_ln(a, vX, vT):
    s = vT
    t = vT + 2
    a(f"v_mov_b32 v{s}, v{vX}")
    wg_sum(a, s, t, 0)
    a(f"v_mul_f32 v{s}, 0x3b000000, v{s}")
    a(f"v_sub_f32 v{s+1}, v{vX}, v{s}")
    a(f"v_mul_f32 v{s+1}, v{s+1}, v{s+1}")
    wg_sum(a, s + 1, t, 1)
    a(f"v_mul_f32 v{s+1}, 0x3b000000, v{s+1}")
    bf16r(a, s, s)
    bf16r(a, s + 1, s + 1)
    a(f"v_sub_f32 v{s}, v{vX}, v{s}")
    bf16r(a, s, s)
    a(f"v_add_f32 v{s+1}, 0x3727c5ac, v{s+1}")
    bf16r(a, s + 1, s + 1)
    a(f"v_sqrt_f32 v{s+1}, v{s+1}")
    bf16r(a, s + 1, s + 1)
    a(f"""
    v_rcp_f32 v{t}, v{s+1}
    v_mul_f32 v{t+1}, v{s}, v{t}
    v_fma_f32 v{t+2}, -v{t+1}, v{s+1}, v{s}
    v_fma_f32 v{t+1}, v{t+2}, v{t}, v{t+1}
    v_cvt_pk_bf16_f32 v{t+1}, v{t+1}, v{t+1}
    """)
    playout_addr(a, t + 2, 0, t + 3)
    a(f"ds_write_b16 v{t+2}, v{t+1} offset:{LDS_XN}")
    a("s_waitcnt lgkmcnt(0)")
    a("s_barrier")


def gemv16(a, slots, tmp, acc, pb, vpaddr, poff):
    zero(a, acc, 32)
    a(f"ds_read_b128 v[{pb}:{pb+3}], v{vpaddr} offset:{poff}")
    a(f"ds_read_b128 v[{pb+4}:{pb+7}], v{vpaddr} offset:{poff+64}")
    for tile in range(2):
        for u in range(4):
            n = tile * 8 + 2 * u + 1
            a(f"s_waitcnt vmcnt({15 - n})")
            perm_pair(a, slots[n - 1], slots[n], tmp, u)
        a("s_waitcnt lgkmcnt(0)")
        mfma8(a, tmp, pb + 4 * tile, acc)


def k_pre(L):
    isA = (L % 2 == 0)
    name = f"pre{L}_kernel"
    a = Asm()
    end = f"L_end_pre{L}"
    prologue(a, 256, end)
    a(f"s_lshr_b32 s{S_T0}, s2, 5")
    SL = [64 + 4 * i for i in range(16)]
    TMP, ACC, PB = 128, 160, 192
    a(f"""
    s_and_b32 s{S_T1}, s2, 31
    s_lshl_b32 s{S_T1}, s{S_T1}, 8
    """)
    srd(a, SRD_C, P_AWQ if isA else P_BWQ, f"s{S_T1}", 512 * 8192 - 7936)
    a(f"""
    v_lshrrev_b32 v3, 4, v2
    v_lshlrev_b32 v3, 13, v3
    v_and_b32 v4, 15, v2
    v_lshl_add_u32 v3, v4, 4, v3
    s_lshl_b32 s{S_T2}, s{S_WAVE}, 19
    """)
    for i in range(16):
        a(f"buffer_load_dwordx4 v[{SL[i]}:{SL[i]+3}], v3, s[{SRD_C}:{SRD_C+3}], s{S_T2} offen")
        if i < 15:
            a(f"s_add_u32 s{S_T2}, s{S_T2}, 32768")
    vX = 5
    stage_x(a, L, vX, 8)
    if L >= 1:
        lab = f"L_nox_pre{L}"
        a(f"""
        s_and_b32 s{S_T1}, s2, 31
        s_cmp_lg_u32 s{S_T1}, 0
        s_cbranch_scc1 {lab}
        s_lshl_b32 s{S_T1}, s{S_T0}, 10
        s_add_u32 s{S_T1}, s{S_T1}, {WS_X + L*8192}
        """)
        srd(a, SRD_A, P_WS, f"s{S_T1}", 1024)
        a(f"""
        v_lshlrev_b32 v8, 1, v0
        v_lshrrev_b32 v9, 16, v{vX}
        buffer_store_short v9, v8, s[{SRD_A}:{SRD_A+3}], 0 offen
        s_nop 3
        """)
        a.label(lab)
    stage_ln(a, vX, 8)
    a(f"""
    v_lshrrev_b32 v6, 4, v2
    v_lshlrev_b32 v6, 4, v6
    s_lshl_b32 s{S_T1}, s{S_WAVE}, 7
    v_add_u32 v6, s{S_T1}, v6
    """)
    gemv16(a, SL, TMP, ACC, PB, 6, LDS_XN)
    a(f"""
    v_and_b32 v7, 15, v2
    v_cmp_eq_u32 s[{S_M0}:{S_M0+1}], 0, v7
    v_lshrrev_b32 v7, 4, v2
    v_lshlrev_b32 v7, 7, v7
    s_lshl_b32 s{S_T1}, s{S_WAVE}, 9
    v_add_u32 v7, s{S_T1}, v7
    v_add_u32 v7, {LDS_ORED}, v7
    """)
    dump_acc(a, ACC, 7, S_M0)
    a("s_waitcnt lgkmcnt(0)")
    a("s_barrier")
    a(f"""
    s_cmp_ge_u32 s{S_WAVE}, 2
    s_cbranch_scc1 {end}
    v_lshlrev_b32 v7, 2, v0
    """)
    for w in range(8):
        a(f"ds_read_b32 v{8+w}, v7 offset:{LDS_ORED + w*512}")
    a("s_waitcnt lgkmcnt(0)")
    for w in range(1, 8):
        a(f"v_add_f32 v8, v8, v{8+w}")
    a(f"""
    v_cvt_pk_bf16_f32 v8, v8, v8
    s_lshl_b32 s{S_T1}, s2, 8
    s_add_u32 s{S_T1}, s{S_T1}, {WS_Q + L*65536}
    """)
    srd(a, SRD_A, P_WS, f"s{S_T1}", 256)
    a(f"""
    v_lshlrev_b32 v7, 1, v0
    buffer_store_short v8, v7, s[{SRD_A}:{SRD_A+3}], 0 offen
    """)
    a.label(end)
    a("s_endpgm")
    return name, a


def k_attn(L):
    isA = (L % 2 == 0)
    NH = 4 if isA else 1
    NK = 32 if isA else 128
    NT = NK // 8
    RB = NK * 1024 * 8
    name = f"attn{L}_kernel"
    a = Asm()
    end = f"L_end_attn{L}"
    prologue(a, 256, end)
    D = D_INFLIGHT
    VOFF0, VOFF1 = 3, 4
    Q = 8
    T = 24
    S = 40
    ACC = 56
    TMP = 88
    PB = 120
    SL0 = 128
    X0 = 192
    SL = [SL0 + 4 * i for i in range(RING)]
    a(f"s_lshl_b32 s{S_T1}, s2, {18 if isA else 20}")
    srd(a, SRD_A, P_AK if isA else P_BK, f"s{S_T1}", RB)
    srd(a, SRD_B, P_AV if isA else P_BV, f"s{S_T1}", RB)
    a(f"""
    v_lshlrev_b32 v{VOFF0}, 4, v2
    v_add_u32 v{VOFF1}, 4096, v{VOFF0}
    s_lshl_b32 s{S_T2}, s{S_WAVE}, 13
    """)

    def issue(n):
        if n >= 2 * NK:
            return
        sr = SRD_A if n < NK else SRD_B
        m = n % NK
        tile, t = m // 8, m % 8
        if t == 0:
            a(f"s_add_u32 s{S_T3}, s{S_T2}, {tile * 65536}")
        vo = VOFF0 if t < 4 else VOFF1
        sl = SL[n % RING]
        a(f"buffer_load_dwordx4 v[{sl}:{sl+3}], v{vo}, s[{sr}:{sr+3}], s{S_T3} offen offset:{(t%4)*1024} nt")

    if isA:
        a(f"s_and_b32 s{S_T1}, s2, 0xfc")
        a(f"s_lshl_b32 s{S_T1}, s{S_T1}, 8")
    else:
        a(f"s_lshl_b32 s{S_T1}, s2, 8")
    a(f"s_add_u32 s{S_T1}, s{S_T1}, {WS_Q + L*65536}")
    srd(a, SRD_C, P_WS, f"s{S_T1}", 256 * NH)
    a(f"""
    v_and_b32 v5, 15, v2
    v_lshlrev_b32 v5, 4, v5
    """)
    for h in range(NH):
        a(f"buffer_load_dwordx4 v[{Q+4*h}:{Q+4*h+3}], v5, s[{SRD_C}:{SRD_C+3}], 0 offen offset:{h*256}")
    for n in range(D):
        issue(n)
    a(f"""
    v_and_b32 v5, 2, v2
    v_cmp_ne_u32 s[{S_M0}:{S_M0+1}], 0, v5
    v_and_b32 v5, 1, v2
    v_cmp_ne_u32 s[{S_M1}:{S_M1+1}], 0, v5
    """)

    def rs_bank(lo, hi, bit):
        if bit == 3:
            a(f"v_add_f32_dpp v{lo}, v{lo}, v{lo} row_ror:8 row_mask:0xf bank_mask:0x3")
            a(f"v_add_f32_dpp v{lo}, v{hi}, v{hi} row_ror:8 row_mask:0xf bank_mask:0xc")
        else:
            a(f"v_add_f32_dpp v{lo}, v{lo}, v{lo} row_shl:4 row_mask:0xf bank_mask:0x5")
            a(f"v_add_f32_dpp v{lo}, v{hi}, v{hi} row_shr:4 row_mask:0xf bank_mask:0xa")

    def rs_quad(lo, hi, bit, dst=None):
        qp = "[2,3,0,1]" if bit == 1 else "[1,0,3,2]"
        m = S_M0 if bit == 1 else S_M1
        dst = lo if dst is None else dst
        a(f"v_add_f32_dpp v{lo}, v{lo}, v{lo} quad_perm:{qp} row_mask:0xf bank_mask:0xf")
        a(f"v_add_f32_dpp v{hi}, v{hi}, v{hi} quad_perm:{qp} row_mask:0xf bank_mask:0xf")
        a(f"v_cndmask_b32 v{dst}, v{lo}, v{hi}, s[{m}:{m+1}]")

    def round_score(r):
        bf16r(a, r, r)
        a(f"v_mul_f32 v{r}, s{S_SCALE}, v{r}")
        bf16r(a, r, r)

    for n in range(NK):
        issue(n + D)
        outstanding = min(n + D, 2 * NK - 1) - n
        a(f"s_waitcnt vmcnt({outstanding})")
        sl = SL[n % RING]
        tile, t = n // 8, n % 8
        if NH == 1:
            tr = T + t
            for w in range(4):
                a(f"v_dot2_f32_bf16 v{tr}, v{sl+w}, v{Q+w}, {'0' if w == 0 else 'v%d' % tr}")
            if t == 7:
                for i in range(4):
                    rs_bank(T + i, T + i + 4, 3)
                for i in range(2):
                    rs_bank(T + i, T + i + 2, 2)
                rs_quad(T, T + 1, 1)
                a(f"v_add_f32_dpp v{S+tile}, v{T}, v{T} quad_perm:[1,0,3,2] row_mask:0xf bank_mask:0xf")
                round_score(S + tile)
        else:
            tq = t % 4
            for w in range(4):
                for h in range(4):
                    tr = T + h * 4 + tq
                    a(f"v_dot2_f32_bf16 v{tr}, v{sl+w}, v{Q+4*h+w}, {'0' if w == 0 else 'v%d' % tr}")
            if tq == 3:
                for i in range(8):
                    rs_bank(T + i, T + i + 8, 3)
                for i in range(4):
                    rs_bank(T + i, T + i + 4, 2)
                for i in range(2):
                    rs_quad(T + i, T + i + 2, 1)
                si = S + tile * 2 + t // 4
                rs_quad(T, T + 1, 0, dst=si)
                round_score(si)
    NS = NT if NH == 1 else NT * 2
    m, l, t0 = X0, X0 + 1, X0 + 2
    a(f"v_max_f32 v{m}, v{S}, v{S+1}")
    for i in range(2, NS):
        a(f"v_max_f32 v{m}, v{m}, v{S+i}")
    bits = (0, 1, 2, 3, 4, 5) if NH == 1 else (0, 1, 4, 5)
    wave_allreduce(a, m, t0, "v_max_f32", bits)
    a(f"v_mov_b32 v{l}, 0")
    for i in range(NS):
        a(f"v_sub_f32 v{t0}, v{S+i}, v{m}")
        a(f"v_mul_f32 v{t0}, s{S_LOG2E}, v{t0}")
        a(f"v_exp_f32 v{t0}, v{t0}")
        a(f"v_add_f32 v{l}, v{l}, v{t0}")
    wave_allreduce(a, l, t0, "v_add_f32", bits)
    if NH == 1:
        a(f"v_mul_f32 v{l}, 0.5, v{l}")
    hd = X0 + 3
    if NH == 4:
        a(f"v_bfe_u32 v{hd}, v2, 2, 2")
        a(f"v_lshlrev_b32 v{hd}, 3, v{hd}")
    else:
        a(f"v_mov_b32 v{hd}, 0")
    a(f"""
    s_lshl_b32 s{S_T1}, s{S_WAVE}, 5
    v_add_u32 v{t0}, s{S_T1}, v{hd}
    ds_write_b64 v{t0}, v[{m}:{m+1}] offset:{LDS_RED}
    s_waitcnt lgkmcnt(0)
    s_barrier
    """)
    RD = T
    for w in range(8):
        a(f"ds_read_b64 v[{RD+2*w}:{RD+2*w+1}], v{hd} offset:{LDS_RED + w*32}")
    a("s_waitcnt lgkmcnt(0)")
    a(f"v_max_f32 v{m}, v{RD}, v{RD+2}")
    for w in range(2, 8):
        a(f"v_max_f32 v{m}, v{m}, v{RD+2*w}")
    a(f"v_mov_b32 v{l}, 0")
    for w in range(8):
        a(f"v_sub_f32 v{t0}, v{RD+2*w}, v{m}")
        a(f"v_mul_f32 v{t0}, s{S_LOG2E}, v{t0}")
        a(f"v_exp_f32 v{t0}, v{t0}")
        a(f"v_fma_f32 v{l}, v{t0}, v{RD+2*w+1}, v{l}")
    pa = X0 + 4
    rl = X0 + 5
    if NH == 1:
        a(f"""
        v_lshrrev_b32 v{pa}, 4, v2
        v_lshlrev_b32 v{pa}, 4, v{pa}
        v_bfe_u32 v{t0}, v2, 1, 3
        v_lshl_add_u32 v{pa}, v{t0}, 1, v{pa}
        v_rcp_f32 v{rl}, v{l}
        """)
    else:
        a(f"""
        v_lshrrev_b32 v{pa}, 4, v2
        v_lshlrev_b32 v{pa}, 4, v{pa}
        v_bfe_u32 v{t0}, v2, 2, 2
        v_lshl_add_u32 v{pa}, v{t0}, 6, v{pa}
        v_and_b32 v{t0}, 3, v2
        v_lshl_add_u32 v{pa}, v{t0}, 1, v{pa}
        """)
    a(f"""
    s_lshl_b32 s{S_T1}, s{S_WAVE}, 10
    v_add_u32 v{pa}, s{S_T1}, v{pa}
    """)
    for i in range(NS):
        a(f"v_sub_f32 v{t0}, v{S+i}, v{m}")
        a(f"v_mul_f32 v{t0}, s{S_LOG2E}, v{t0}")
        a(f"v_exp_f32 v{t0}, v{t0}")
        if NH == 1:
            a(f"v_mul_f32 v{t0}, v{t0}, v{rl}")
            off = LDS_P + i * 64
        else:
            off = LDS_P + (i // 2) * 256 + (i % 2) * 8
        a(f"v_cvt_pk_bf16_f32 v{t0}, v{t0}, v{t0}")
        a(f"ds_write_b16 v{pa}, v{t0} offset:{off}")
    pr = X0 + 6
    a(f"""
    v_lshrrev_b32 v{pr}, 4, v2
    v_lshlrev_b32 v{pr}, 4, v{pr}
    """)
    if NH == 4:
        a(f"""
        v_and_b32 v{t0}, 3, v2
        v_lshl_add_u32 v{pr}, v{t0}, 6, v{pr}
        """)
    a(f"v_add_u32 v{pr}, s{S_T1}, v{pr}")
    zero(a, ACC, 32)
    a("s_waitcnt lgkmcnt(0)")
    for n in range(NK, 2 * NK):
        issue(n + D)
        m_ = n - NK
        tile, t = m_ // 8, m_ % 8
        if t == 0:
            pb = PB + 4 * (tile % 2)
            a(f"ds_read_b128 v[{pb}:{pb+3}], v{pr} offset:{LDS_P + tile * 64 * NH}")
        if t % 2 == 1:
            outstanding = min(n + D, 2 * NK - 1) - n
            a(f"s_waitcnt vmcnt({outstanding})")
            perm_pair(a, SL[(n - 1) % RING], SL[n % RING], TMP, t // 2)
            if t == 7:
                a("s_waitcnt lgkmcnt(0)")
                mfma8(a, TMP, PB + 4 * (tile % 2), ACC)
    da = X0 + 7
    a(f"""
    v_and_b32 v{t0}, 15, v2
    v_cmp_gt_u32 s[{S_M0}:{S_M0+1}], {NH}, v{t0}
    v_lshlrev_b32 v{da}, 9, v{t0}
    v_lshrrev_b32 v{t0}, 4, v2
    v_lshl_add_u32 v{da}, v{t0}, 7, v{da}
    s_mul_i32 s{S_T1}, s{S_WAVE}, {NH*512}
    v_add_u32 v{da}, s{S_T1}, v{da}
    v_add_u32 v{da}, {LDS_ORED}, v{da}
    """)
    dump_acc(a, ACC, da, S_M0)
    a("s_waitcnt lgkmcnt(0)")
    a("s_barrier")
    a(f"""
    s_lshl_b32 s{S_T1}, s2, 12
    s_add_u32 s{S_T1}, s{S_T1}, {WS_OP + L*0x100000}
    """)
    srd(a, SRD_C, P_WS, f"s{S_T1}", 4096)
    a(f"""
    s_cmp_ge_u32 s{S_WAVE}, {NH*2}
    s_cbranch_scc1 {end}
    v_lshlrev_b32 v{da}, 2, v0
    """)
    for w in range(8):
        a(f"ds_read_b32 v{T+w}, v{da} offset:{LDS_ORED + w*NH*512}")
    a("s_waitcnt lgkmcnt(0)")
    for w in range(1, 8):
        a(f"v_add_f32 v{T}, v{T}, v{T+w}")
    a(f"buffer_store_dword v{T}, v{da}, s[{SRD_C}:{SRD_C+3}], 0 offen")
    a(f"""
    s_cmp_lg_u32 s{S_WAVE}, 0
    s_cbranch_scc1 {end}
    v_and_b32 v{t0}, {0x33 if NH == 4 else 0x3f}, v2
    v_cmp_eq_u32 vcc, 0, v{t0}
    s_and_saveexec_b64 s[{S_M1}:{S_M1+1}], vcc
    buffer_store_dwordx2 v[{m}:{m+1}], v{hd}, s[{SRD_C}:{SRD_C+3}], 0 offen offset:2048
    """)
    a.label(end)
    a("s_endpgm")
    return name, a


def k_post(L):
    isA = (L % 2 == 0)
    name = f"post{L}_kernel"
    a = Asm()
    end = f"L_end_post{L}"
    prologue(a, 256, end)
    SL = [64 + 4 * i for i in range(16)]
    TMP, ACC, PB = 128, 160, 192
    a(f"""
    s_and_b32 s{S_T1}, s2, 31
    s_lshl_b32 s{S_T1}, s{S_T1}, 17
    """)
    srd(a, SRD_C, P_AWO if isA else P_BWO, f"s{S_T1}", 131072)
    a(f"""
    v_lshrrev_b32 v3, 4, v2
    v_lshlrev_b32 v3, 10, v3
    v_and_b32 v4, 15, v2
    v_lshl_add_u32 v3, v4, 4, v3
    s_lshr_b32 s{S_T2}, s{S_WAVE}, 2
    s_lshl_b32 s{S_T2}, s{S_T2}, 16
    s_and_b32 s{S_T3}, s{S_WAVE}, 3
    s_lshl_b32 s{S_T3}, s{S_T3}, 8
    s_add_u32 s{S_T2}, s{S_T2}, s{S_T3}
    """)
    for i in range(16):
        a(f"buffer_load_dwordx4 v[{SL[i]}:{SL[i]+3}], v3, s[{SRD_C}:{SRD_C+3}], s{S_T2} offen")
        if i < 15:
            a(f"s_add_u32 s{S_T2}, s{S_T2}, 4096")
    lab = f"L_skipc_post{L}"
    a(f"""
    s_cmp_ge_u32 s{S_WAVE}, 2
    s_cbranch_scc1 {lab}
    """)
    if isA:
        a(f"""
        s_and_b32 s{S_T1}, s2, 0xfc
        s_lshl_b32 s{S_T1}, s{S_T1}, 12
        s_add_u32 s{S_T1}, s{S_T1}, {WS_OP + L*0x100000}
        """)
        srd(a, SRD_A, P_WS, f"s{S_T1}", 16384)
        a(f"""
        s_and_b32 s{S_T1}, s2, 3
        s_lshl_b32 s{S_T2}, s{S_T1}, 9
        s_lshl_b32 s{S_T3}, s{S_T1}, 3
        v_lshlrev_b32 v5, 2, v0
        v_add_u32 v5, s{S_T2}, v5
        v_mov_b32 v6, s{S_T3}
        """)
        for s in range(4):
            a(f"s_mov_b32 s{S_T1}, {s*4096}")
            a(f"buffer_load_dword v{8+s}, v5, s[{SRD_A}:{SRD_A+3}], s{S_T1} offen")
            a(f"buffer_load_dwordx2 v[{12+2*s}:{13+2*s}], v6, s[{SRD_A}:{SRD_A+3}], s{S_T1} offen offset:2048")
        a("s_waitcnt vmcnt(0)")
        a(f"""
        v_max_f32 v20, v12, v14
        v_max3_f32 v20, v20, v16, v18
        v_mov_b32 v21, 0
        v_mov_b32 v22, 0
        """)
        for s in range(4):
            a(f"""
            v_sub_f32 v23, v{12+2*s}, v20
            v_mul_f32 v23, s{S_LOG2E}, v23
            v_exp_f32 v23, v23
            v_fma_f32 v21, v23, v{13+2*s}, v21
            v_fma_f32 v22, v23, v{8+s}, v22
            """)
        a(f"""
        v_rcp_f32 v21, v21
        v_mul_f32 v22, v22, v21
        """)
    else:
        a(f"""
        s_lshl_b32 s{S_T1}, s2, 12
        s_add_u32 s{S_T1}, s{S_T1}, {WS_OP + L*0x100000}
        """)
        srd(a, SRD_A, P_WS, f"s{S_T1}", 4096)
        a(f"""
        v_lshlrev_b32 v5, 2, v0
        buffer_load_dword v22, v5, s[{SRD_A}:{SRD_A+3}], 0 offen
        s_waitcnt vmcnt(0)
        """)
    a("v_cvt_pk_bf16_f32 v22, v22, v22")
    playout_addr(a, 23, 0, 24)
    a(f"ds_write_b16 v23, v22 offset:{LDS_XN}")
    a("s_nop 3")
    a.label(lab)
    a("s_waitcnt lgkmcnt(0)")
    a("s_barrier")
    a(f"""
    v_lshrrev_b32 v6, 4, v2
    v_lshlrev_b32 v6, 4, v6
    s_lshr_b32 s{S_T1}, s{S_WAVE}, 2
    s_lshl_b32 s{S_T1}, s{S_T1}, 7
    v_add_u32 v6, s{S_T1}, v6
    s_waitcnt vmcnt(0)
    """)
    gemv16(a, SL, TMP, ACC, PB, 6, LDS_XN)
    a(f"""
    v_and_b32 v7, 15, v2
    v_cmp_eq_u32 s[{S_M0}:{S_M0+1}], 0, v7
    v_lshrrev_b32 v7, 4, v2
    v_lshlrev_b32 v7, 7, v7
    s_lshl_b32 s{S_T1}, s{S_WAVE}, 9
    v_add_u32 v7, s{S_T1}, v7
    v_add_u32 v7, {LDS_ORED}, v7
    """)
    dump_acc(a, ACC, 7, S_M0)
    a(f"""
    s_waitcnt lgkmcnt(0)
    s_barrier
    v_lshlrev_b32 v7, 2, v0
    ds_read_b32 v8, v7 offset:{LDS_ORED}
    ds_read_b32 v9, v7 offset:{LDS_ORED + 2048}
    s_lshl_b32 s{S_T1}, s2, 11
    s_add_u32 s{S_T1}, s{S_T1}, {WS_PART + L*0x80000}
    """)
    srd(a, SRD_A, P_WS, f"s{S_T1}", 2048)
    a(f"""
    s_waitcnt lgkmcnt(0)
    v_add_f32 v8, v8, v9
    buffer_store_dword v8, v7, s[{SRD_A}:{SRD_A+3}], 0 offen
    """)
    a.label(end)
    a("s_endpgm")
    return name, a


def k_final():
    name = "final_kernel"
    a = Asm()
    end = "L_end_final"
    prologue(a, 8, end)
    a(f"s_mov_b32 s{S_T0}, s2")
    stage_x(a, 4, 5, 8)
    a(f"s_lshl_b32 s{S_T1}, s2, 10")
    srd(a, SRD_A, P_OUT, f"s{S_T1}", 1024)
    a(f"""
    v_lshlrev_b32 v8, 1, v0
    v_lshrrev_b32 v9, 16, v5
    buffer_store_short v9, v8, s[{SRD_A}:{SRD_A+3}], 0 offen
    """)
    a.label(end)
    a("s_endpgm")
    return name, a


def main():
    ks = []
    for L in range(4):
        ks.append(k_pre(L) + (256,))
        ks.append(k_attn(L) + (256,))
        ks.append(k_post(L) + (256,))
    ks.append(k_final() + (8,))
    out = HDR
    for name, a, g in ks:
        out += f"; @launch kernel={name} grid=({g},1,1) block=(512,1,1) lds={LDS_TOTAL}\n"
    out += '.amdgcn_target "amdgcn-amd-amdhsa--gfx950"\n.text\n'
    for name, a, g in ks:
        out += f".globl {name}\n.p2align 8\n.type {name},@function\n{name}:\n" + a.text()
    out += '.section .rodata,"a"\n'
    for name, a, g in ks:
        out += ".p2align 6\n" + kd(name)
    path = sys.argv[1] if len(sys.argv) > 1 else f"cdna_kernels/{NAME}.s"
    open(path, "w").write(out)
    print("wrote", path, len(out), "bytes")


main()
```

```python
import sys, os
sys.path.insert(0, os.path.dirname(__file__))
from asmlib import Asm

NAME = "interleave_layers__gqa_block_cached__mha_block_cached__decode"
HDR = open("cdna_kernels/%s.s.ref" % NAME).read().split("; Override launch")[0]

D = int(os.environ.get("DEPTH", "8"))
RING = int(os.environ.get("RING", "40"))
AHEAD = RING - 2
CATCH = int(os.environ.get("CATCH", "4"))
NSW = 4

P_AX, P_AK, P_AV, P_AWQ, P_AWO, P_BX, P_BK, P_BV, P_BWQ, P_BWO, P_OUT, P_DBG, P_WS = [16 + 2 * i for i in range(13)]
WG_STRIDE = 32768
O_PART = 0
O_QX = 8192
O_OX = 10240
O_END = 18432

S_WAVE = 42
S_SELLO, S_SELHI = 43, 44
S_T0, S_T1, S_T2, S_T3 = 45, 46, 47, 48
S_BUDGET = 49
S_EPOCH = 50
S_B = 51
SRD_A, SRD_B, SRD_C, SRD_D, SRD_E, SRD_F = 52, 56, 60, 64, 76, 80
S_M0, S_M1 = 68, 70
S_LOG2E = 72
S_SCALE = 73
S_ITER = 74
S_WOFF = 75

LOG2E = 0x3fb8aa3b
SCALE = 0x3db504f3

F_X, F_Q, F_E1, F_S, F_QRDY = 0, 16, 32, 48, 64
L_RED = 128
L_STAT = 256
L_XBUF = 512
L_QRED = 2560
L_QAREA = 4608
L_SP = 5632
L_TR = 6656
L_P = 9216
L_ORED = 17408
LDS_TOTAL = 25600

_uid = [0]


def uid(p):
    _uid[0] += 1
    return f"L_{p}_{_uid[0]}"


def srd(a, r, p, off, size):
    a(f"""
    s_add_u32 s{r}, s{p}, {off}
    s_addc_u32 s{r+1}, s{p+1}, 0
    s_mov_b32 s{r+2}, {size:#x}
    s_mov_b32 s{r+3}, 0x20000
    """)


def bf16r(a, dst, src):
    a(f"v_cvt_pk_bf16_f32 v{dst}, v{src}, v{src}")
    a(f"v_lshlrev_b32 v{dst}, 16, v{dst}")


def wave_allreduce(a, v, t, op, bits=(0, 1, 2, 3, 4, 5)):
    for b in bits:
        if b == 0:
            a(f"{op}_dpp v{v}, v{v}, v{v} quad_perm:[1,0,3,2] row_mask:0xf bank_mask:0xf")
        elif b == 1:
            a(f"{op}_dpp v{v}, v{v}, v{v} quad_perm:[2,3,0,1] row_mask:0xf bank_mask:0xf")
        elif b == 2:
            a(f"{op}_dpp v{v}, v{v}, v{v} row_half_mirror row_mask:0xf bank_mask:0xf")
        elif b == 3:
            a(f"{op}_dpp v{v}, v{v}, v{v} row_mirror row_mask:0xf bank_mask:0xf")
        elif b == 4:
            a(f"v_mov_b32 v{t}, v{v}")
            a(f"v_permlane16_swap_b32 v{v}, v{t}")
            a(f"{op} v{v}, v{v}, v{t}")
        elif b == 5:
            a(f"v_mov_b32 v{t}, v{v}")
            a(f"v_permlane32_swap_b32 v{v}, v{t}")
            a(f"{op} v{v}, v{v}, v{t}")


def perm_pair(a, l0, l1, tmp, u):
    for w in range(4):
        a(f"v_perm_b32 v{tmp + 4*(2*w) + u}, v{l1 + w}, v{l0 + w}, s{S_SELLO}")
        a(f"v_perm_b32 v{tmp + 4*(2*w+1) + u}, v{l1 + w}, v{l0 + w}, s{S_SELHI}")


def mfma8(a, tmp, pb, acc):
    for e in range(8):
        a(f"v_mfma_f32_16x16x32_bf16 v[{acc+4*e}:{acc+4*e+3}], v[{tmp+4*e}:{tmp+4*e+3}], v[{pb}:{pb+3}], v[{acc+4*e}:{acc+4*e+3}]")


def zero(a, base, n):
    for i in range(n):
        a(f"v_mov_b32 v{base+i}, 0")


def dump_acc(a, acc, vaddr, maskreg, off=0):
    a(f"s_mov_b64 exec, s[{maskreg}:{maskreg+1}]")
    for e in range(8):
        for r in range(4):
            a(f"ds_write_b32 v{vaddr}, v{acc+4*e+r} offset:{off + (8*r+e)*4}")
    a("s_mov_b64 exec, -1")


def budget_loop(a, lab):
    a(f"""
    s_sub_u32 s{S_BUDGET}, s{S_BUDGET}, 1
    s_cmp_gt_i32 s{S_BUDGET}, 0
    s_cbranch_scc1 {lab}
    """)


def lds_set(a, off, epoch, vz, vt):
    a(f"v_mov_b32 v{vt}, {epoch}")
    a(f"ds_write_b32 v{vz}, v{vt} offset:{off}")


def lds_wait(a, off, n, epoch, vzero, vt):
    lab = uid("lw")
    done = uid("lwd")
    a("s_nop 1")
    a.label(lab)
    if n == 4:
        a(f"""
        ds_read_b128 v[{vt}:{vt+3}], v{vzero} offset:{off}
        s_waitcnt lgkmcnt(0)
        v_min_u32 v{vt}, v{vt}, v{vt+1}
        v_min3_u32 v{vt}, v{vt}, v{vt+2}, v{vt+3}
        """)
    else:
        a(f"""
        ds_read_b32 v{vt}, v{vzero} offset:{off}
        s_waitcnt lgkmcnt(0)
        """)
    a(f"""
    v_cmp_gt_u32 vcc, {epoch}, v{vt}
    s_nop 1
    s_cbranch_vccz {done}
    s_sleep 1
    """)
    budget_loop(a, lab)
    a.label(done)


def gen_stream(a):
    VOFF0, VOFF1, VZ = 3, 4, 5
    Q, T, S, X0 = 16, 32, 48, 64
    ACC, TMP, PB = 16, 48, 80
    SL0 = 88
    SL = [SL0 + 4 * i for i in range(RING)]
    W4 = 8
    a(f"s_lshl_b32 s{S_T1}, s2, 18")
    srd(a, SRD_A, P_AK, f"s{S_T1}", 1 << 18)
    srd(a, SRD_B, P_AV, f"s{S_T1}", 1 << 18)
    srd(a, SRD_E, P_AK, f"s{S_T1}", 1 << 18)
    a(f"s_lshl_b32 s{S_T1}, s2, 20")
    srd(a, SRD_C, P_BK, f"s{S_T1}", 1 << 20)
    srd(a, SRD_D, P_BV, f"s{S_T1}", 1 << 20)
    a(f"""
    v_lshlrev_b32 v{VOFF0}, 4, v2
    v_add_u32 v{VOFF1}, 4096, v{VOFF0}
    v_mov_b32 v{VZ}, 0
    s_lshl_b32 s{S_WOFF}, s{S_WAVE}, 13
    v_and_b32 v6, 2, v2
    v_cmp_ne_u32 s[{S_M0}:{S_M0+1}], 0, v6
    v_and_b32 v6, 1, v2
    v_cmp_ne_u32 s[{S_M1}:{S_M1+1}], 0, v6
    s_mov_b32 s{S_ITER}, 0
    """)
    NKA, NKB = 64, 256
    TOT = 2 * NKA + 2 * NKB
    assert TOT % RING == 0

    def issue(n, first=False):
        wrap = n >= TOT
        p = n % TOT
        if p < NKA:
            sr, m = (SRD_E if wrap else SRD_A), p
        elif p < 2 * NKA:
            sr, m = SRD_B, p - NKA
        elif p < 2 * NKA + NKB:
            sr, m = SRD_C, p - 2 * NKA
        else:
            sr, m = SRD_D, p - 2 * NKA - NKB
        tile, t = m // 8, m % 8
        if t == 0:
            a(f"s_add_u32 s{S_T3}, s{S_WOFF}, {tile * NSW * 8192}")
        vo = VOFF0 if t < 4 else VOFF1
        sl = SL[n % RING]
        a(f"buffer_load_dwordx4 v[{sl}:{sl+3}], v{vo}, s[{sr}:{sr+3}], s{S_T3} offen offset:{(t%4)*1024} nt")

    st = {"issued": 0}

    def paced_issue():
        a(f"s_waitcnt vmcnt({D-1})")
        issue(st["issued"])
        st["issued"] += 1

    for n in range(AHEAD):
        if n >= D:
            paced_issue()
        else:
            issue(n)
            st["issued"] += 1

    def rs_bank(lo, hi, bit):
        if bit == 3:
            a(f"v_add_f32_dpp v{lo}, v{lo}, v{lo} row_ror:8 row_mask:0xf bank_mask:0x3")
            a(f"v_add_f32_dpp v{lo}, v{hi}, v{hi} row_ror:8 row_mask:0xf bank_mask:0xc")
        else:
            a(f"v_add_f32_dpp v{lo}, v{lo}, v{lo} row_shl:4 row_mask:0xf bank_mask:0x5")
            a(f"v_add_f32_dpp v{lo}, v{hi}, v{hi} row_shr:4 row_mask:0xf bank_mask:0xa")

    def rs_quad(lo, hi, bit, dst=None):
        qp = "[2,3,0,1]" if bit == 1 else "[1,0,3,2]"
        m = S_M0 if bit == 1 else S_M1
        dst = lo if dst is None else dst
        a(f"v_add_f32_dpp v{lo}, v{lo}, v{lo} quad_perm:{qp} row_mask:0xf bank_mask:0xf")
        a(f"v_add_f32_dpp v{hi}, v{hi}, v{hi} quad_perm:{qp} row_mask:0xf bank_mask:0xf")
        a(f"v_cndmask_b32 v{dst}, v{lo}, v{hi}, s[{m}:{m+1}]")

    def reduce16(dst):
        for i in range(8):
            rs_bank(T + i, T + i + 8, 3)
        for i in range(4):
            rs_bank(T + i, T + i + 4, 2)
        for i in range(2):
            rs_quad(T + i, T + i + 2, 1)
        rs_quad(T, T + 1, 0, dst=dst)
        bf16r(a, dst, dst)
        a(f"v_mul_f32 v{dst}, s{S_SCALE}, v{dst}")
        bf16r(a, dst, dst)

    cnt = {"k": 0}

    def pre_consume(n):
        dist = st["issued"] - n
        if dist <= D:
            issue(st["issued"])
            st["issued"] += 1
        else:
            cnt["k"] += 1
            if cnt["k"] % CATCH == 0 and dist < AHEAD:
                paced_issue()

    def wait_for(n):
        a(f"s_waitcnt vmcnt({st['issued'] - n - 1})")

    loop = "L_stream_loop"
    a("s_nop 7")
    a.label(loop)
    for li, (isA, p0) in enumerate(((True, 0), (False, 2 * NKA))):
        NH = 4 if isA else 1
        NK = NKA if isA else NKB
        NT = NK // 8
        a(f"s_lshl_b32 s{S_EPOCH}, s{S_ITER}, 1")
        a(f"s_add_u32 s{S_EPOCH}, s{S_EPOCH}, {li + 1}")
        ep = f"s{S_EPOCH}"
        lds_wait(a, F_QRDY, 1, ep, VZ, W4)
        a(f"""
        v_and_b32 v6, 15, v2
        v_lshlrev_b32 v6, 4, v6
        """)
        for h in range(NH):
            a(f"ds_read_b128 v[{Q+4*h}:{Q+4*h+3}], v6 offset:{L_QAREA + h*256}")
        a("s_waitcnt lgkmcnt(0)")
        cnt["k"] = 0
        for m in range(NK):
            n = p0 + m
            pre_consume(n)
            wait_for(n)
            sl = SL[n % RING]
            if NH == 1:
                i = m % 16
                tr = T + i
                for w in range(4):
                    a(f"v_dot2_f32_bf16 v{tr}, v{sl+w}, v{Q+w}, {'0' if w == 0 else 'v%d' % tr}")
                if i == 15:
                    reduce16(S + m // 16)
            else:
                tq = m % 4
                for w in range(4):
                    for h in range(4):
                        tr = T + h * 4 + tq
                        a(f"v_dot2_f32_bf16 v{tr}, v{sl+w}, v{Q+4*h+w}, {'0' if w == 0 else 'v%d' % tr}")
                if tq == 3:
                    reduce16(S + m // 4)
        NS = 16
        mx, l, t0 = X0, X0 + 1, X0 + 2
        a(f"v_max_f32 v{mx}, v{S}, v{S+1}")
        for i in range(2, NS):
            a(f"v_max_f32 v{mx}, v{mx}, v{S+i}")
        bits = (0, 1, 2, 3, 4, 5) if NH == 1 else (0, 1, 4, 5)
        wave_allreduce(a, mx, t0, "v_max_f32", bits)
        a(f"v_mov_b32 v{l}, 0")
        for i in range(NS):
            a(f"v_sub_f32 v{t0}, v{S+i}, v{mx}")
            a(f"v_mul_f32 v{t0}, s{S_LOG2E}, v{t0}")
            a(f"v_exp_f32 v{t0}, v{t0}")
            a(f"v_add_f32 v{l}, v{l}, v{t0}")
        wave_allreduce(a, l, t0, "v_add_f32", bits)
        hd = X0 + 3
        if NH == 4:
            a(f"v_bfe_u32 v{hd}, v2, 2, 2")
            a(f"v_lshlrev_b32 v{hd}, 3, v{hd}")
        else:
            a(f"v_mov_b32 v{hd}, 0")
        a(f"""
        s_lshl_b32 s{S_T1}, s{S_WAVE}, 5
        v_add_u32 v{t0}, s{S_T1}, v{hd}
        ds_write_b64 v{t0}, v[{mx}:{mx+1}] offset:{L_RED}
        s_lshl_b32 s{S_T1}, s{S_WAVE}, 2
        v_mov_b32 v{t0}, s{S_T1}
        s_waitcnt lgkmcnt(0)
        """)
        lds_set(a, F_S, ep, t0, t0 + 2)
        lds_wait(a, F_S, 4, ep, VZ, W4)
        RD = T
        for w in range(NSW):
            a(f"ds_read_b64 v[{RD+2*w}:{RD+2*w+1}], v{hd} offset:{L_RED + w*32}")
        a("s_waitcnt lgkmcnt(0)")
        a(f"v_max_f32 v{mx}, v{RD}, v{RD+2}")
        for w in range(2, NSW):
            a(f"v_max_f32 v{mx}, v{mx}, v{RD+2*w}")
        a(f"v_mov_b32 v{l}, 0")
        for w in range(NSW):
            a(f"v_sub_f32 v{t0}, v{RD+2*w}, v{mx}")
            a(f"v_mul_f32 v{t0}, s{S_LOG2E}, v{t0}")
            a(f"v_exp_f32 v{t0}, v{t0}")
            a(f"v_fma_f32 v{l}, v{t0}, v{RD+2*w+1}, v{l}")
        if NH == 4:
            a(f"ds_write_b64 v{hd}, v[{mx}:{mx+1}] offset:{L_STAT}")
        pa, rl = X0 + 4, X0 + 5
        if NH == 1:
            a(f"""
            v_lshrrev_b32 v{pa}, 4, v2
            v_lshlrev_b32 v{pa}, 4, v{pa}
            v_bfe_u32 v{t0}, v2, 3, 1
            v_lshl_add_u32 v{pa}, v{t0}, 6, v{pa}
            v_and_b32 v{t0}, 7, v2
            v_lshl_add_u32 v{pa}, v{t0}, 1, v{pa}
            v_rcp_f32 v{rl}, v{l}
            """)
        else:
            a(f"""
            v_lshrrev_b32 v{pa}, 4, v2
            v_lshlrev_b32 v{pa}, 4, v{pa}
            v_bfe_u32 v{t0}, v2, 2, 2
            v_lshl_add_u32 v{pa}, v{t0}, 6, v{pa}
            v_and_b32 v{t0}, 3, v2
            v_lshl_add_u32 v{pa}, v{t0}, 1, v{pa}
            """)
        a(f"""
        s_lshl_b32 s{S_T1}, s{S_WAVE}, 11
        v_add_u32 v{pa}, s{S_T1}, v{pa}
        """)
        for i in range(NS):
            a(f"v_sub_f32 v{t0}, v{S+i}, v{mx}")
            a(f"v_mul_f32 v{t0}, s{S_LOG2E}, v{t0}")
            a(f"v_exp_f32 v{t0}, v{t0}")
            if NH == 1:
                a(f"v_mul_f32 v{t0}, v{t0}, v{rl}")
                off = L_P + i * 128
            else:
                off = L_P + (i // 2) * 256 + (i % 2) * 8
            a(f"v_cvt_pk_bf16_f32 v{t0}, v{t0}, v{t0}")
            a(f"ds_write_b16 v{pa}, v{t0} offset:{off}")
        pr = 7
        a(f"""
        v_lshrrev_b32 v{pr}, 4, v2
        v_lshlrev_b32 v{pr}, 4, v{pr}
        """)
        if NH == 4:
            a(f"""
            v_and_b32 v{t0}, 3, v2
            v_lshl_add_u32 v{pr}, v{t0}, 6, v{pr}
            """)
        a(f"v_add_u32 v{pr}, s{S_T1}, v{pr}")
        a("s_waitcnt lgkmcnt(0)")
        zero(a, ACC, 32)
        for m in range(NK):
            n = p0 + NK + m
            pre_consume(n)
            tile, t = m // 8, m % 8
            if t == 0:
                pb = PB + 4 * (tile % 2)
                a(f"ds_read_b128 v[{pb}:{pb+3}], v{pr} offset:{L_P + tile * 64 * NH}")
            if t % 2 == 1:
                wait_for(n)
                perm_pair(a, SL[(n - 1) % RING], SL[n % RING], TMP, t // 2)
                if t == 7:
                    a("s_waitcnt lgkmcnt(0)")
                    mfma8(a, TMP, PB + 4 * (tile % 2), ACC)
        da, t1 = 12, 13
        a(f"""
        v_and_b32 v{t1}, 15, v2
        v_cmp_gt_u32 vcc, {NH}, v{t1}
        v_lshlrev_b32 v{da}, 9, v{t1}
        v_lshrrev_b32 v{t1}, 4, v2
        v_lshl_add_u32 v{da}, v{t1}, 7, v{da}
        s_lshl_b32 s{S_T1}, s{S_WAVE}, 11
        v_add_u32 v{da}, s{S_T1}, v{da}
        s_mov_b64 s[{SRD_F}:{SRD_F+1}], vcc
        """)
        dump_acc(a, ACC, da, SRD_F, L_ORED)
        a(f"""
        s_lshl_b32 s{S_T1}, s{S_WAVE}, 2
        v_mov_b32 v{t1}, s{S_T1}
        s_waitcnt lgkmcnt(0)
        """)
        lds_set(a, F_E1, ep, t1, t1 + 1)
        if not isA:
            pass
        end = p0 + 2 * NK
        while st["issued"] - end < AHEAD:
            paced_issue()
        if isA:
            a(f"""
            s_cmp_eq_u32 s{S_ITER}, 1
            s_cselect_b32 s{SRD_E+2}, 0, s{SRD_E+2}
            """)
    assert st["issued"] == TOT + AHEAD
    a(f"""
    s_add_u32 s{S_ITER}, s{S_ITER}, 1
    s_cmp_lt_u32 s{S_ITER}, 2
    s_nop 7
    s_cbranch_scc1 {loop}
    s_endpgm
    """)


def gen_service(a):
    W = [64 + 4 * i for i in range(32)]
    TMP, ACC, PB = 192, 224, 48
    G = 192
    VZ, VX0, VX1 = 5, 6, 7
    W4 = 8
    SW = S_T0
    a(f"""
    s_setprio 2
    s_sub_u32 s{SW}, s{S_WAVE}, 4
    v_mov_b32 v{VZ}, 0
    v_and_b32 v3, 15, v2
    v_cmp_eq_u32 s[{S_M0}:{S_M0+1}], 0, v3
    v_cmp_eq_u32 s[{S_M1}:{S_M1+1}], 0, v2
    """)
    a(f"""
    v_lshrrev_b32 v14, 4, v2
    v_lshlrev_b32 v12, 13, v14
    v_lshl_add_u32 v12, v3, 4, v12
    v_lshlrev_b32 v13, 10, v14
    v_lshl_add_u32 v13, v3, 4, v13
    """)
    a(f"""
    s_lshl_b32 s{S_T1}, s{SW}, 8
    v_lshlrev_b32 v15, 4, v14
    v_add_u32 v15, s{S_T1}, v15
    v_lshlrev_b32 v16, 7, v14
    v_lshlrev_b32 v17, 3, v2
    """)
    a(f"s_lshl_b32 s{S_T1}, s{S_B}, 20")
    srd(a, SRD_B, P_WS, f"s{S_T1}", 32 * WG_STRIDE)
    a(f"""
    s_and_b32 s{S_WOFF}, s2, 31
    s_lshl_b32 s{S_WOFF}, s{S_WOFF}, 15
    """)

    def issue_wq(L):
        isA = L % 2 == 0
        a(f"""
        s_and_b32 s{S_T1}, s2, 31
        s_lshl_b32 s{S_T1}, s{S_T1}, 8
        """)
        srd(a, SRD_C, P_AWQ if isA else P_BWQ, f"s{S_T1}", 512 * 8192 - 7936)
        a(f"s_lshl_b32 s{S_T2}, s{SW}, 20")
        for i in range(32):
            a(f"buffer_load_dwordx4 v[{W[i]}:{W[i]+3}], v12, s[{SRD_C}:{SRD_C+3}], s{S_T2} offen")
            if i < 31:
                a(f"s_add_u32 s{S_T2}, s{S_T2}, 32768")

    def issue_wo(L):
        isA = L % 2 == 0
        a(f"""
        s_and_b32 s{S_T1}, s2, 31
        s_lshl_b32 s{S_T1}, s{S_T1}, 17
        """)
        srd(a, SRD_C, P_AWO if isA else P_BWO, f"s{S_T1}", 131072)
        a(f"s_lshl_b32 s{S_T2}, s{SW}, 8")
        for i in range(32):
            a(f"buffer_load_dwordx4 v[{W[i]}:{W[i]+3}], v13, s[{SRD_C}:{SRD_C+3}], s{S_T2} offen")
            if i < 31:
                a(f"s_add_u32 s{S_T2}, s{S_T2}, 4096")

    def gemv32():
        zero(a, ACC, 32)
        for t in range(4):
            a(f"ds_read_b128 v[{PB+4*t}:{PB+4*t+3}], v15 offset:{L_SP + t*64}")
        for tile in range(4):
            for u in range(4):
                n = tile * 8 + 2 * u + 1
                perm_pair(a, W[n - 1], W[n], TMP, u)
            if tile == 0:
                a("s_waitcnt lgkmcnt(0)")
            mfma8(a, TMP, PB + 4 * tile, ACC)

    def write_p2(v0r, v1r, t):
        a(f"""
        v_cvt_pk_bf16_f32 v{t}, v{v0r}, v{v1r}
        v_lshrrev_b32 v{t+1}, 4, v2
        v_lshlrev_b32 v{t+1}, 6, v{t+1}
        v_and_b32 v{t+2}, 1, v2
        v_lshl_add_u32 v{t+1}, v{t+2}, 5, v{t+1}
        v_bfe_u32 v{t+2}, v2, 1, 3
        v_lshl_add_u32 v{t+1}, v{t+2}, 1, v{t+1}
        s_lshl_b32 s{S_T1}, s{SW}, 8
        v_add_u32 v{t+1}, s{S_T1}, v{t+1}
        ds_write_b16 v{t+1}, v{t} offset:{L_SP}
        ds_write_b16_d16_hi v{t+1}, v{t} offset:{L_SP + 16}
        s_waitcnt lgkmcnt(0)
        """)

    def part_gather(L):
        lab, done = uid("ps"), uid("psd")
        a(f"""
        v_and_b32 v18, 31, v2
        v_lshlrev_b32 v18, 15, v18
        s_lshl_b32 s{S_T1}, s{SW}, 9
        s_add_u32 s{S_T1}, s{S_T1}, {O_PART + L*2048}
        s_nop 1
        """)
        a.label(lab)
        a(f"""
        buffer_load_dword v19, v18, s[{SRD_B}:{SRD_B+3}], s{S_T1} offen sc1
        s_waitcnt vmcnt(0)
        v_cmp_eq_u32 vcc, 0, v19
        s_nop 1
        s_cbranch_vccz {done}
        s_sleep 2
        """)
        budget_loop(a, lab)
        a.label(done)
        lab, done = uid("pf"), uid("pfd")
        a.label(lab)
        a(f"s_mov_b32 s{S_T2}, s{S_T1}")
        for h in range(32):
            a(f"buffer_load_dwordx2 v[{G+2*h}:{G+2*h+1}], v17, s[{SRD_B}:{SRD_B+3}], s{S_T2} offen sc1")
            if h < 31:
                a(f"s_add_u32 s{S_T2}, s{S_T2}, {WG_STRIDE}")
        a("s_waitcnt vmcnt(0)")
        a(f"v_and_b32 v19, v{G}, v{G+1}")
        for i in range(2, 64):
            a(f"v_and_b32 v19, v19, v{G+i}")
        a(f"""
        v_and_b32 v19, 1, v19
        v_cmp_eq_u32 vcc, 0, v19
        s_nop 1
        s_cbranch_vccz {done}
        s_sleep 1
        """)
        budget_loop(a, lab)
        a.label(done)
        for h in range(1, 32):
            a(f"v_add_f32 v{G}, v{G}, v{G+2*h}")
            a(f"v_add_f32 v{G+1}, v{G+1}, v{G+2*h+1}")
        bf16r(a, G, G)
        bf16r(a, G + 1, G + 1)
        a(f"v_add_f32 v{VX0}, v{VX0}, v{G}")
        a(f"v_add_f32 v{VX1}, v{VX1}, v{G+1}")
        bf16r(a, VX0, VX0)
        bf16r(a, VX1, VX1)

    issue_wq(0)
    a(f"s_lshl_b32 s{S_T1}, s{S_B}, 10")
    srd(a, SRD_A, P_AX, f"s{S_T1}", 1024)
    a(f"""
    v_subrev_u32 v18, 256, v0
    v_lshlrev_b32 v18, 2, v18
    buffer_load_dword v19, v18, s[{SRD_A}:{SRD_A+3}], 0 offen
    """)
    skip = uid("nz")
    a(f"""
    s_cmp_lg_u32 s{SW}, 3
    s_cbranch_scc1 {skip}
    v_lshlrev_b32 v20, 4, v2
    v_mov_b32 v24, 0
    v_mov_b32 v25, 0
    v_mov_b32 v26, 0
    v_mov_b32 v27, 0
    s_mov_b32 s{S_T2}, s{S_WOFF}
    """)
    for i in range(O_END // 1024):
        a(f"buffer_store_dwordx4 v[24:27], v20, s[{SRD_B}:{SRD_B+3}], s{S_T2} offen sc1")
        if i < O_END // 1024 - 1:
            a(f"s_add_u32 s{S_T2}, s{S_T2}, 1024")
    srd(a, SRD_D, P_DBG, 0, 256)
    a(f"""
    s_lshl_b32 s{S_T1}, s{S_B}, 5
    v_mov_b32 v20, s{S_T1}
    v_mov_b32 v21, 1
    s_waitcnt vmcnt(0)
    s_mov_b64 exec, s[{S_M1}:{S_M1+1}]
    buffer_atomic_add v21, v20, s[{SRD_D}:{SRD_D+3}], 0 offen sc1
    s_mov_b64 exec, -1
    s_nop 3
    """)
    a.label(skip)
    a(f"""
    s_waitcnt vmcnt(0)
    v_lshlrev_b32 v{VX0}, 16, v19
    v_and_b32 v{VX1}, 0xffff0000, v19
    """)

    for L in range(4):
        isA = L % 2 == 0
        Li = L // 2
        ep = L + 1
        if L > 0:
            part_gather(L - 1)
        a(f"""
        v_subrev_u32 v18, 256, v0
        v_lshlrev_b32 v18, 3, v18
        ds_write_b64 v18, v[{VX0}:{VX1}] offset:{L_XBUF}
        s_lshl_b32 s{S_T1}, s{SW}, 2
        v_mov_b32 v19, s{S_T1}
        s_waitcnt lgkmcnt(0)
        """)
        lds_set(a, F_X, ep, 19, 20)
        lds_wait(a, F_X, 4, ep, VZ, W4)
        a(f"""
        v_lshlrev_b32 v18, 5, v2
        ds_read_b128 v[24:27], v18 offset:{L_XBUF}
        ds_read_b128 v[28:31], v18 offset:{L_XBUF + 16}
        s_waitcnt lgkmcnt(0)
        v_add_f32 v20, v24, v25
        """)
        for i in range(26, 32):
            a(f"v_add_f32 v20, v20, v{i}")
        wave_allreduce(a, 20, 22, "v_add_f32")
        a("v_mul_f32 v20, 0x3b000000, v20")
        a("v_mov_b32 v21, 0")
        for i in range(24, 32):
            a(f"v_sub_f32 v22, v{i}, v20")
            a("v_fma_f32 v21, v22, v22, v21")
        wave_allreduce(a, 21, 22, "v_add_f32")
        a("v_mul_f32 v21, 0x3b000000, v21")
        bf16r(a, 20, 20)
        bf16r(a, 21, 21)
        a("v_add_f32 v21, 0x3727c5ac, v21")
        bf16r(a, 21, 21)
        a("v_sqrt_f32 v21, v21")
        bf16r(a, 21, 21)
        a("v_rcp_f32 v22, v21")
        for (xr, o) in ((VX0, 24), (VX1, 25)):
            a(f"v_sub_f32 v26, v{xr}, v20")
            bf16r(a, 26, 26)
            a(f"""
            v_mul_f32 v{o}, v26, v22
            v_fma_f32 v27, -v{o}, v21, v26
            v_fma_f32 v{o}, v27, v22, v{o}
            """)
        write_p2(24, 25, 28)
        a("s_waitcnt vmcnt(0)")
        gemv32()
        a(f"""
        s_lshl_b32 s{S_T1}, s{SW}, 9
        v_add_u32 v18, s{S_T1}, v16
        """)
        dump_acc(a, ACC, 18, S_M0, L_QRED)
        a(f"""
        s_lshl_b32 s{S_T1}, s{SW}, 2
        v_mov_b32 v19, s{S_T1}
        s_waitcnt lgkmcnt(0)
        """)
        lds_set(a, F_Q, ep, 19, 20)
        skip = uid("nq")
        a(f"""
        s_cmp_lg_u32 s{SW}, 0
        s_cbranch_scc1 {skip}
        """)
        lds_wait(a, F_Q, 4, ep, VZ, W4)
        for w in range(4):
            a(f"ds_read_b64 v[{24+2*w}:{25+2*w}], v17 offset:{L_QRED + w*512}")
        a("s_waitcnt lgkmcnt(0)")
        for w in range(1, 4):
            a(f"v_add_f32 v24, v24, v{24+2*w}")
            a(f"v_add_f32 v25, v25, v{25+2*w}")
        a("v_lshlrev_b32 v18, 2, v2")
        if not isA:
            a(f"""
            v_cvt_pk_bf16_f32 v24, v24, v25
            ds_write_b32 v18, v24 offset:{L_QAREA}
            """)
        else:
            bf16r(a, 24, 24)
            bf16r(a, 25, 25)
            a(f"""
            v_or_b32 v24, 1, v24
            v_or_b32 v25, 1, v25
            s_add_u32 s{S_T1}, s{S_WOFF}, {O_QX + Li*512}
            buffer_store_dwordx2 v[24:25], v17, s[{SRD_B}:{SRD_B+3}], s{S_T1} offen sc1
            """)
            if L == 0:
                lab, done = uid("gt"), uid("gtd")
                srd(a, SRD_D, P_DBG, 0, 256)
                a(f"""
                s_lshl_b32 s{S_T1}, s{S_B}, 5
                v_mov_b32 v20, s{S_T1}
                s_nop 1
                """)
                a.label(lab)
                a(f"""
                buffer_load_dword v21, v20, s[{SRD_D}:{SRD_D+3}], 0 offen sc1
                s_waitcnt vmcnt(0)
                v_cmp_gt_u32 vcc, 32, v21
                s_nop 1
                s_cbranch_vccz {done}
                s_sleep 2
                """)
                budget_loop(a, lab)
                a.label(done)
            lab, done = uid("qx"), uid("qxd")
            a(f"""
            s_and_b32 s{S_T1}, s{S_WOFF}, {(~(4*WG_STRIDE - 1)) & 0xffffffff:#x}
            s_add_u32 s{S_T1}, s{S_T1}, {O_QX + Li*512}
            s_nop 1
            """)
            a.label(lab)
            a(f"s_mov_b32 s{S_T2}, s{S_T1}")
            for h in range(4):
                a(f"buffer_load_dwordx2 v[{24+2*h}:{25+2*h}], v17, s[{SRD_B}:{SRD_B+3}], s{S_T2} offen sc1")
                if h < 3:
                    a(f"s_add_u32 s{S_T2}, s{S_T2}, {WG_STRIDE}")
            a("s_waitcnt vmcnt(0)")
            a("v_and_b32 v19, v24, v25")
            for i in range(26, 32):
                a(f"v_and_b32 v19, v19, v{i}")
            a(f"""
            v_and_b32 v19, 1, v19
            v_cmp_eq_u32 vcc, 0, v19
            s_nop 1
            s_cbranch_vccz {done}
            s_sleep 1
            """)
            budget_loop(a, lab)
            a.label(done)
            for h in range(4):
                a(f"v_perm_b32 v20, v{25+2*h}, v{24+2*h}, s{S_SELHI}")
                a(f"ds_write_b32 v18, v20 offset:{L_QAREA + h*256}")
        a("s_waitcnt lgkmcnt(0)")
        lds_set(a, F_QRDY, ep, VZ, 20)
        a("s_nop 3")
        a.label(skip)
        issue_wo(L)
        lds_wait(a, F_E1, 4, ep, VZ, W4)
        if not isA:
            for w in range(NSW):
                a(f"ds_read_b64 v[{24+2*w}:{25+2*w}], v17 offset:{L_ORED + w*2048}")
            a("s_waitcnt lgkmcnt(0)")
            for w in range(1, NSW):
                a(f"v_add_f32 v24, v24, v{24+2*w}")
                a(f"v_add_f32 v25, v25, v{25+2*w}")
        else:
            a(f"""
            s_lshl_b32 s{S_T1}, s{SW}, 9
            v_add_u32 v18, s{S_T1}, v17
            s_lshl_b32 s{S_T1}, s{SW}, 3
            v_mov_b32 v19, s{S_T1}
            """)
            for w in range(NSW):
                a(f"ds_read_b64 v[{24+2*w}:{25+2*w}], v18 offset:{L_ORED + w*2048}")
            a(f"ds_read_b64 v[32:33], v19 offset:{L_STAT}")
            a("s_waitcnt lgkmcnt(0)")
            for w in range(1, NSW):
                a(f"v_add_f32 v24, v24, v{24+2*w}")
                a(f"v_add_f32 v25, v25, v{25+2*w}")
            a(f"""
            v_or_b32 v24, 1, v24
            v_or_b32 v25, 1, v25
            v_or_b32 v32, 1, v32
            v_or_b32 v33, 1, v33
            s_and_b32 s{S_T1}, s{S_WOFF}, {(~(4*WG_STRIDE - 1)) & 0xffffffff:#x}
            s_lshl_b32 s{S_T2}, s{SW}, 15
            s_add_u32 s{S_T1}, s{S_T1}, s{S_T2}
            s_and_b32 s{S_T2}, s2, 3
            s_lshl_b32 s{S_T2}, s{S_T2}, 10
            s_add_u32 s{S_T1}, s{S_T1}, s{S_T2}
            s_add_u32 s{S_T1}, s{S_T1}, {O_OX + Li*4096}
            buffer_store_dwordx2 v[24:25], v17, s[{SRD_B}:{SRD_B+3}], s{S_T1} offen sc1
            s_mov_b64 exec, s[{S_M1}:{S_M1+1}]
            buffer_store_dwordx2 v[32:33], v{VZ}, s[{SRD_B}:{SRD_B+3}], s{S_T1} offen offset:512 sc1
            s_mov_b64 exec, -1
            s_add_u32 s{S_T1}, s{S_WOFF}, {O_OX + Li*4096}
            s_nop 1
            """)
            lab, done = uid("ox"), uid("oxd")
            a.label(lab)
            for s in range(4):
                a(f"buffer_load_dwordx2 v[{24+2*s}:{25+2*s}], v17, s[{SRD_B}:{SRD_B+3}], s{S_T1} offen offset:{s*1024} sc1")
                a(f"buffer_load_dwordx2 v[{32+2*s}:{33+2*s}], v{VZ}, s[{SRD_B}:{SRD_B+3}], s{S_T1} offen offset:{s*1024+512} sc1")
            a("s_waitcnt vmcnt(0)")
            a("v_and_b32 v19, v24, v25")
            for i in range(26, 40):
                a(f"v_and_b32 v19, v19, v{i}")
            a(f"""
            v_and_b32 v19, 1, v19
            v_cmp_eq_u32 vcc, 0, v19
            s_nop 1
            s_cbranch_vccz {done}
            s_sleep 1
            """)
            budget_loop(a, lab)
            a.label(done)
            a(f"""
            v_max_f32 v40, v32, v34
            v_max3_f32 v40, v40, v36, v38
            v_mov_b32 v41, 0
            v_mov_b32 v42, 0
            v_mov_b32 v43, 0
            """)
            for s in range(4):
                a(f"""
                v_sub_f32 v44, v{32+2*s}, v40
                v_mul_f32 v44, s{S_LOG2E}, v44
                v_exp_f32 v44, v44
                v_fma_f32 v41, v44, v{33+2*s}, v41
                v_fma_f32 v42, v44, v{24+2*s}, v42
                v_fma_f32 v43, v44, v{25+2*s}, v43
                """)
            a(f"""
            v_rcp_f32 v41, v41
            v_mul_f32 v24, v42, v41
            v_mul_f32 v25, v43, v41
            """)
        write_p2(24, 25, 28)
        a("s_waitcnt vmcnt(0)")
        gemv32()
        a(f"""
        s_lshl_b32 s{S_T1}, s{SW}, 9
        v_add_u32 v18, s{S_T1}, v16
        """)
        dump_acc(a, ACC, 18, S_M0, L_TR)
        a(f"""
        v_add_u32 v18, s{S_T1}, v17
        s_waitcnt lgkmcnt(0)
        ds_read_b64 v[24:25], v18 offset:{L_TR}
        s_add_u32 s{S_T1}, s{S_T1}, s{S_WOFF}
        s_add_u32 s{S_T1}, s{S_T1}, {O_PART + L*2048}
        s_waitcnt lgkmcnt(0)
        v_or_b32 v24, 1, v24
        v_or_b32 v25, 1, v25
        buffer_store_dwordx2 v[24:25], v17, s[{SRD_B}:{SRD_B+3}], s{S_T1} offen sc1
        """)
        if L < 3:
            issue_wq(L + 1)
    a(f"""
    s_cmp_lg_u32 s{S_WOFF}, 0
    s_cbranch_scc1 L_end
    """)
    part_gather(3)
    a(f"s_lshl_b32 s{S_T1}, s{S_B}, 10")
    srd(a, SRD_A, P_OUT, f"s{S_T1}", 1024)
    a(f"""
    v_subrev_u32 v18, 256, v0
    v_lshlrev_b32 v18, 2, v18
    v_perm_b32 v19, v{VX1}, v{VX0}, s{S_SELHI}
    buffer_store_dword v19, v18, s[{SRD_A}:{SRD_A+3}], 0 offen
    s_endpgm
    """)


def main():
    a = Asm()
    name = NAME + "_kernel"
    a(f"""
    s_cmp_ge_u32 s2, 256
    s_cbranch_scc1 L_end
    s_load_dwordx16 s[16:31], s[0:1], 0
    s_load_dwordx8 s[32:39], s[0:1], 64
    s_load_dwordx2 s[40:41], s[0:1], 96
    v_lshrrev_b32 v1, 6, v0
    v_and_b32 v2, 63, v0
    v_readfirstlane_b32 s{S_WAVE}, v1
    s_mov_b32 s{S_SELLO}, 0x05040100
    s_mov_b32 s{S_SELHI}, 0x07060302
    s_mov_b32 s{S_LOG2E}, {LOG2E:#x}
    s_mov_b32 s{S_SCALE}, {SCALE:#x}
    s_mov_b32 s{S_BUDGET}, 400000
    s_lshr_b32 s{S_B}, s2, 5
    v_and_b32 v3, 31, v2
    v_lshlrev_b32 v3, 2, v3
    v_mov_b32 v4, 0
    ds_write_b32 v3, v4
    s_waitcnt lgkmcnt(0)
    s_barrier
    s_cmp_ge_u32 s{S_WAVE}, 4
    s_cbranch_scc1 L_service
    """)
    gen_stream(a)
    a.label("L_service")
    gen_service(a)
    a.label("L_end")
    a("s_endpgm")
    out = HDR
    out += f"; @launch grid=(256,1,1) block=(512,1,1) lds={LDS_TOTAL}\n"
    out += '.amdgcn_target "amdgcn-amd-amdhsa--gfx950"\n.text\n'
    out += f".globl {name}\n.p2align 8\n.type {name},@function\n{name}:\n" + a.text()
    out += '.section .rodata,"a"\n.p2align 6\n'
    out += f""".amdhsa_kernel {name}
  .amdhsa_next_free_vgpr 256
  .amdhsa_next_free_sgpr 96
  .amdhsa_accum_offset 256
  .amdhsa_group_segment_fixed_size 0
  .amdhsa_kernarg_size 104
  .amdhsa_user_sgpr_count 2
  .amdhsa_user_sgpr_kernarg_segment_ptr 1
  .amdhsa_system_sgpr_workgroup_id_x 1
  .amdhsa_float_denorm_mode_32 3
.end_amdhsa_kernel
"""
    path = sys.argv[1] if len(sys.argv) > 1 else f"cdna_kernels/{NAME}.s"
    open(path, "w").write(out)
    print("wrote", path, len(out), "bytes")


main()
```

```python
import sys, os
sys.path.insert(0, os.path.dirname(__file__))
from asmlib import Asm

NAME = "interleave_layers__gqa_block_cached__mha_block_cached__decode"
HDR = open("cdna_kernels/%s.s.ref" % NAME).read().split("; Override launch")[0]

D = int(os.environ.get("DEPTH", "8"))
RING = int(os.environ.get("RING", "40"))
CATCH = int(os.environ.get("CATCH", "4"))
NL = int(os.environ.get("NL", "32"))
NSTG = 4
MDIR = RING - D - NSTG
XSM = int(os.environ.get("XSM", "8"))
NSW = 4

P_AX, P_AK, P_AV, P_AWQ, P_AWO, P_BX, P_BK, P_BV, P_BWQ, P_BWO, P_OUT, P_DBG, P_WS = [16 + 2 * i for i in range(13)]
WG_STRIDE = 32768
O_PART = 0
O_QX = 8192
O_OX = 10240
O_END = 18432

S_WAVE = 42
S_SELLO, S_SELHI = 43, 44
S_T0, S_T1, S_T2, S_T3 = 45, 46, 47, 48
S_BUDGET = 49
S_EPOCH = 50
S_B = 51
SRD_A, SRD_B, SRD_C, SRD_D, SRD_E, SRD_F, SRD_G = 52, 56, 60, 64, 76, 80, 92
S_M0, S_M1 = 68, 70
S_LOG2E = 72
S_SCALE = 73
S_ITER = 74
S_WOFF = 75

LOG2E = 0x3fb8aa3b
SCALE = 0x3db504f3

F_X, F_Q, F_E1, F_S, F_QRDY, F_Z, F_G = 0, 16, 32, 48, 64, 68, 72
L_RED = 128
L_STAT = 256
L_XBUF = 512
L_QRED = 2560
L_QAREA = 4608
L_SP = 5632
L_TR = 6656
L_P = 9216
L_ORED = 17408
L_STG = 25600
LDS_TOTAL = L_STG + 4 * NL * 1024
S_STG = 87

_uid = [0]
STAMP = int(os.environ.get("STAMP", "0"))
V_ST_STREAM = 15
V_ST_SERV = 47


def stamp(a, vreg, idx, dyn=False):
    if not STAMP:
        return
    a("s_memrealtime s[84:85]")
    a("s_waitcnt lgkmcnt(0)")
    if dyn:
        a(f"s_lshl_b32 s86, s{S_ITER}, 4")
        a(f"s_add_u32 m0, s86, {idx}")
        a("s_nop 3")
        a(f"v_writelane_b32 v{vreg}, s84, m0")
    else:
        a(f"v_writelane_b32 v{vreg}, s84, {idx}")


def stamp_out(a, vreg):
    if not STAMP:
        return
    a(f"""
    s_lshl_b32 s86, s2, 3
    s_add_u32 s86, s86, s{S_WAVE}
    s_lshl_b32 s86, s86, 8
    s_add_u32 s86, s86, 0x2000000
    """)
    srd(a, 88, P_WS, "s86", 256)
    a(f"""
    v_lshlrev_b32 v1, 2, v2
    buffer_store_dword v{vreg}, v1, s[88:91], 0 offen
    """)


def uid(p):
    _uid[0] += 1
    return f"L_{p}_{_uid[0]}"


def srd(a, r, p, off, size):
    a(f"""
    s_add_u32 s{r}, s{p}, {off}
    s_addc_u32 s{r+1}, s{p+1}, 0
    s_mov_b32 s{r+2}, {size:#x}
    s_mov_b32 s{r+3}, 0x20000
    """)


def bf16r(a, dst, src):
    a(f"v_cvt_pk_bf16_f32 v{dst}, v{src}, v{src}")
    a(f"v_lshlrev_b32 v{dst}, 16, v{dst}")


def wave_allreduce(a, v, t, op, bits=(0, 1, 2, 3, 4, 5)):
    for b in bits:
        if b == 0:
            a(f"{op}_dpp v{v}, v{v}, v{v} quad_perm:[1,0,3,2] row_mask:0xf bank_mask:0xf")
        elif b == 1:
            a(f"{op}_dpp v{v}, v{v}, v{v} quad_perm:[2,3,0,1] row_mask:0xf bank_mask:0xf")
        elif b == 2:
            a(f"{op}_dpp v{v}, v{v}, v{v} row_half_mirror row_mask:0xf bank_mask:0xf")
        elif b == 3:
            a(f"{op}_dpp v{v}, v{v}, v{v} row_mirror row_mask:0xf bank_mask:0xf")
        elif b == 4:
            a(f"v_mov_b32 v{t}, v{v}")
            a(f"v_permlane16_swap_b32 v{v}, v{t}")
            a(f"{op} v{v}, v{v}, v{t}")
        elif b == 5:
            a(f"v_mov_b32 v{t}, v{v}")
            a(f"v_permlane32_swap_b32 v{v}, v{t}")
            a(f"{op} v{v}, v{v}, v{t}")


def perm_pair(a, l0, l1, tmp, u):
    for w in range(4):
        a(f"v_perm_b32 v{tmp + 4*(2*w) + u}, v{l1 + w}, v{l0 + w}, s{S_SELLO}")
        a(f"v_perm_b32 v{tmp + 4*(2*w+1) + u}, v{l1 + w}, v{l0 + w}, s{S_SELHI}")


def mfma8(a, tmp, pb, acc):
    for e in range(8):
        a(f"v_mfma_f32_16x16x32_bf16 v[{acc+4*e}:{acc+4*e+3}], v[{tmp+4*e}:{tmp+4*e+3}], v[{pb}:{pb+3}], v[{acc+4*e}:{acc+4*e+3}]")


def zero(a, base, n):
    for i in range(n):
        a(f"v_mov_b32 v{base+i}, 0")


def dump_acc(a, acc, vaddr, maskreg, off=0):
    a(f"s_mov_b64 exec, s[{maskreg}:{maskreg+1}]")
    for e in range(8):
        for r in range(4):
            a(f"ds_write_b32 v{vaddr}, v{acc+4*e+r} offset:{off + (8*r+e)*4}")
    a("s_mov_b64 exec, -1")


def budget_loop(a, lab):
    a(f"""
    s_sub_u32 s{S_BUDGET}, s{S_BUDGET}, 1
    s_cmp_gt_i32 s{S_BUDGET}, 0
    s_cbranch_scc1 {lab}
    """)


def lds_set(a, off, epoch, vz, vt):
    a(f"v_mov_b32 v{vt}, {epoch}")
    a(f"ds_write_b32 v{vz}, v{vt} offset:{off}")


def lds_wait(a, off, n, epoch, vzero, vt):
    lab = uid("lw")
    done = uid("lwd")
    a("s_nop 1")
    a.label(lab)
    if n == 4:
        a(f"""
        ds_read_b128 v[{vt}:{vt+3}], v{vzero} offset:{off}
        s_waitcnt lgkmcnt(0)
        v_min_u32 v{vt}, v{vt}, v{vt+1}
        v_min3_u32 v{vt}, v{vt}, v{vt+2}, v{vt+3}
        """)
    else:
        a(f"""
        ds_read_b32 v{vt}, v{vzero} offset:{off}
        s_waitcnt lgkmcnt(0)
        """)
    a(f"""
    v_cmp_gt_u32 vcc, {epoch}, v{vt}
    s_nop 1
    s_cbranch_vccz {done}
    s_sleep 1
    """)
    budget_loop(a, lab)
    a.label(done)


def gen_stream(a):
    VOFF0, VOFF1, VZ = 3, 4, 5
    Q, T, S, X0 = 16, 32, 48, 64
    ACC, TMP, PB = 16, 48, 80
    SL0 = 88
    W4 = 8
    if STAMP:
        a(f"v_mov_b32 v{V_ST_STREAM}, 0")
        stamp(a, V_ST_STREAM, 63)
    a(f"s_lshl_b32 s{S_T1}, s2, 18")
    srd(a, SRD_A, P_AK, f"s{S_T1}", 1 << 18)
    srd(a, SRD_B, P_AV, f"s{S_T1}", 1 << 18)
    srd(a, SRD_E, P_AK, f"s{S_T1}", 1 << 18)
    srd(a, SRD_G, P_AV, f"s{S_T1}", 1 << 18)
    a(f"s_lshl_b32 s{S_T1}, s2, 20")
    srd(a, SRD_C, P_BK, f"s{S_T1}", 1 << 20)
    srd(a, SRD_D, P_BV, f"s{S_T1}", 1 << 20)
    a(f"""
    v_lshlrev_b32 v{VOFF0}, 4, v2
    v_add_u32 v{VOFF1}, 4096, v{VOFF0}
    v_mov_b32 v{VZ}, 0
    s_lshl_b32 s{S_WOFF}, s{S_WAVE}, 13
    v_and_b32 v6, 2, v2
    v_cmp_ne_u32 s[{S_M0}:{S_M0+1}], 0, v6
    v_and_b32 v6, 1, v2
    v_cmp_ne_u32 s[{S_M1}:{S_M1+1}], 0, v6
    s_mov_b32 s{S_ITER}, 0
    """)
    NKA, NKB = 64, 256
    TOT = 2 * NKA + 2 * NKB
    VSTG = 14
    a(f"""
    s_mul_i32 s{S_STG}, s{S_WAVE}, {NL * 1024}
    s_add_u32 s{S_STG}, s{S_STG}, {L_STG}
    v_add_u32 v{VSTG}, s{S_STG}, v{VOFF0}
    """)
    skipz = uid("nz")
    a(f"""
    s_cmp_lg_u32 s{S_WAVE}, 3
    s_cbranch_scc1 {skipz}
    s_lshl_b32 s{S_T1}, s2, 15
    """)
    srd(a, SRD_F, P_WS, f"s{S_T1}", WG_STRIDE)
    a(f"""
    v_mov_b32 v16, 0
    v_mov_b32 v17, 0
    v_mov_b32 v18, 0
    v_mov_b32 v19, 0
    s_mov_b32 s{S_T2}, 0
    """)
    for i in range(O_END // 1024):
        a(f"buffer_store_dwordx4 v[16:19], v{VOFF0}, s[{SRD_F}:{SRD_F+3}], s{S_T2} offen sc1")
        if i < O_END // 1024 - 1:
            a(f"s_add_u32 s{S_T2}, s{S_T2}, 1024")
    a("s_waitcnt vmcnt(0)")
    srd(a, SRD_F, P_DBG, 0, 256)
    a(f"""
    s_lshl_b32 s{S_T1}, s{S_B}, 5
    v_mov_b32 v20, s{S_T1}
    v_mov_b32 v21, 1
    ds_write_b32 v{VZ}, v21 offset:{F_Z}
    s_mov_b64 exec, 1
    buffer_atomic_add v21, v20, s[{SRD_F}:{SRD_F+3}], 0 offen sc1
    s_mov_b64 exec, -1
    s_nop 3
    """)
    a.label(skipz)

    starts = [0, 2 * NKA, TOT, TOT + 2 * NKA]
    free = list(range(RING))
    slot_of = {}
    ops = []
    st = {"issued": 0}

    def lay(p):
        for i in range(len(starts) - 1):
            if starts[i] <= p < starts[i + 1]:
                return starts[i], starts[i + 1]
        raise ValueError

    def is_staged(p):
        ls, _ = lay(p)
        return D <= p - ls < D + NL

    def staged_pending(n):
        ls, _ = lay(n)
        return any((p not in slot_of) for p in range(max(n, ls + D), ls + D + NL))

    def take_slot(p):
        ls, le = lay(p)
        rel = p - ls
        if rel < D:
            sl = rel
        elif D + NL <= rel < D + NL + MDIR:
            sl = D + rel - D - NL
        else:
            cand = [x for x in free if (x >= D or le - p > 24)]
            sl = min(cand)
        assert sl in free, (p, sl, free)
        free.remove(sl)
        slot_of[p] = sl
        return sl

    def release(p):
        free.append(slot_of[p])

    def SLR(p):
        return SL0 + 4 * slot_of[p]

    def issue(n):
        wrap = n >= TOT
        p = n % TOT
        if p < NKA:
            sr, m = (SRD_E if wrap else SRD_A), p
        elif p < 2 * NKA:
            sr, m = (SRD_G if wrap else SRD_B), p - NKA
        elif p < 2 * NKA + NKB:
            sr, m = SRD_C, p - 2 * NKA
        else:
            sr, m = SRD_D, p - 2 * NKA - NKB
        tile, t = m // 8, m % 8
        if t == 0:
            a(f"s_add_u32 s{S_T3}, s{S_WOFF}, {tile * NSW * 8192}")
        vo = VOFF0 if t < 4 else VOFF1
        if is_staged(n):
            k = n - lay(n)[0] - D
            a(f"s_add_u32 m0, s{S_STG}, {(k - t % 4) * 1024}")
            a(f"buffer_load_dwordx4 v{vo}, s[{sr}:{sr+3}], s{S_T3} offen offset:{(t%4)*1024} nt lds")
        else:
            sl = SL0 + 4 * take_slot(n)
            a(f"buffer_load_dwordx4 v[{sl}:{sl+3}], v{vo}, s[{sr}:{sr+3}], s{S_T3} offen offset:{(t%4)*1024} nt")
        ops.append(n)

    def can_issue(n_cons):
        i = st["issued"]
        if is_staged(i):
            return True
        ls, le = lay(i)
        cand = [x for x in free if (x >= D or le - i > 24)] if (i - ls) >= D else free
        reserve = NSTG if staged_pending(n_cons) else 0
        return len(cand) > reserve

    def do_issue(paced):
        if paced:
            a(f"s_waitcnt vmcnt({D-1})")
        issue(st["issued"])
        st["issued"] += 1

    def run_ahead(end):
        while st["issued"] - end < D + NL + MDIR:
            do_issue(st["issued"] - end >= D)

    run_ahead(0)

    def rs_bank(lo, hi, bit):
        if bit == 3:
            a(f"v_add_f32_dpp v{lo}, v{lo}, v{lo} row_ror:8 row_mask:0xf bank_mask:0x3")
            a(f"v_add_f32_dpp v{lo}, v{hi}, v{hi} row_ror:8 row_mask:0xf bank_mask:0xc")
        else:
            a(f"v_add_f32_dpp v{lo}, v{lo}, v{lo} row_shl:4 row_mask:0xf bank_mask:0x5")
            a(f"v_add_f32_dpp v{lo}, v{hi}, v{hi} row_shr:4 row_mask:0xf bank_mask:0xa")

    def rs_quad(lo, hi, bit, dst=None):
        qp = "[2,3,0,1]" if bit == 1 else "[1,0,3,2]"
        m = S_M0 if bit == 1 else S_M1
        dst = lo if dst is None else dst
        a(f"v_add_f32_dpp v{lo}, v{lo}, v{lo} quad_perm:{qp} row_mask:0xf bank_mask:0xf")
        a(f"v_add_f32_dpp v{hi}, v{hi}, v{hi} quad_perm:{qp} row_mask:0xf bank_mask:0xf")
        a(f"v_cndmask_b32 v{dst}, v{lo}, v{hi}, s[{m}:{m+1}]")

    def reduce16(dst):
        for i in range(8):
            rs_bank(T + i, T + i + 8, 3)
        for i in range(4):
            rs_bank(T + i, T + i + 4, 2)
        for i in range(2):
            rs_quad(T + i, T + i + 2, 1)
        rs_quad(T, T + 1, 0, dst=dst)
        bf16r(a, dst, dst)
        a(f"v_mul_f32 v{dst}, s{S_SCALE}, v{dst}")
        bf16r(a, dst, dst)

    cnt = {"k": 0}

    def pre_consume(n):
        dist = st["issued"] - n
        if dist <= D:
            assert can_issue(n)
            do_issue(False)
        else:
            cnt["k"] += 1
            if cnt["k"] % CATCH == 0 and can_issue(n):
                do_issue(True)

    def wait_op(n):
        a(f"s_waitcnt vmcnt({min(63, len(ops) - 1 - ops.index(n))})")

    def wait_for(n):
        if is_staged(n):
            if n not in slot_of:
                ls, _ = lay(n)
                batch = [p for p in range(n, min(n + NSTG, ls + D + NL))]
                wait_op(batch[-1])
                for p in batch:
                    sl = SL0 + 4 * take_slot(p)
                    a(f"ds_read_b128 v[{sl}:{sl+3}], v{VSTG} offset:{(p - ls - D) * 1024}")
                a("s_waitcnt lgkmcnt(0)")
        else:
            wait_op(n)

    loop = "L_stream_loop"
    a("s_nop 7")
    a.label(loop)
    for li, (isA, p0) in enumerate(((True, 0), (False, 2 * NKA))):
        NH = 4 if isA else 1
        NK = NKA if isA else NKB
        NT = NK // 8
        a(f"s_lshl_b32 s{S_EPOCH}, s{S_ITER}, 1")
        a(f"s_add_u32 s{S_EPOCH}, s{S_EPOCH}, {li + 1}")
        ep = f"s{S_EPOCH}"
        lds_wait(a, F_QRDY, 1, ep, VZ, W4)
        stamp(a, V_ST_STREAM, li * 8 + 0, True)
        a(f"""
        v_and_b32 v6, 15, v2
        v_lshlrev_b32 v6, 4, v6
        """)
        for h in range(NH):
            a(f"ds_read_b128 v[{Q+4*h}:{Q+4*h+3}], v6 offset:{L_QAREA + h*256}")
        a("s_waitcnt lgkmcnt(0)")
        cnt["k"] = 0
        for m in range(NK):
            n = p0 + m
            pre_consume(n)
            wait_for(n)
            sl = SLR(n)
            release(n)
            if NH == 1:
                i = m % 16
                tr = T + i
                for w in range(4):
                    a(f"v_dot2_f32_bf16 v{tr}, v{sl+w}, v{Q+w}, {'0' if w == 0 else 'v%d' % tr}")
                if i == 15:
                    reduce16(S + m // 16)
            else:
                tq = m % 4
                for w in range(4):
                    for h in range(4):
                        tr = T + h * 4 + tq
                        a(f"v_dot2_f32_bf16 v{tr}, v{sl+w}, v{Q+4*h+w}, {'0' if w == 0 else 'v%d' % tr}")
                if tq == 3:
                    reduce16(S + m // 4)
        NS = 16
        for _ in range(XSM):
            if can_issue(p0 + NK):
                do_issue(False)
        stamp(a, V_ST_STREAM, li * 8 + 1, True)
        mx, l, t0 = X0, X0 + 1, X0 + 2
        a(f"v_max_f32 v{mx}, v{S}, v{S+1}")
        for i in range(2, NS):
            a(f"v_max_f32 v{mx}, v{mx}, v{S+i}")
        bits = (0, 1, 2, 3, 4, 5) if NH == 1 else (0, 1, 4, 5)
        wave_allreduce(a, mx, t0, "v_max_f32", bits)
        a(f"v_mov_b32 v{l}, 0")
        for i in range(NS):
            a(f"v_sub_f32 v{t0}, v{S+i}, v{mx}")
            a(f"v_mul_f32 v{t0}, s{S_LOG2E}, v{t0}")
            a(f"v_exp_f32 v{t0}, v{t0}")
            a(f"v_add_f32 v{l}, v{l}, v{t0}")
        wave_allreduce(a, l, t0, "v_add_f32", bits)
        hd = X0 + 3
        if NH == 4:
            a(f"v_bfe_u32 v{hd}, v2, 2, 2")
            a(f"v_lshlrev_b32 v{hd}, 3, v{hd}")
        else:
            a(f"v_mov_b32 v{hd}, 0")
        a(f"""
        s_lshl_b32 s{S_T1}, s{S_WAVE}, 5
        v_add_u32 v{t0}, s{S_T1}, v{hd}
        ds_write_b64 v{t0}, v[{mx}:{mx+1}] offset:{L_RED}
        s_lshl_b32 s{S_T1}, s{S_WAVE}, 2
        v_mov_b32 v{t0}, s{S_T1}
        s_waitcnt lgkmcnt(0)
        """)
        lds_set(a, F_S, ep, t0, t0 + 2)
        lds_wait(a, F_S, 4, ep, VZ, W4)
        RD = T
        for w in range(NSW):
            a(f"ds_read_b64 v[{RD+2*w}:{RD+2*w+1}], v{hd} offset:{L_RED + w*32}")
        a("s_waitcnt lgkmcnt(0)")
        a(f"v_max_f32 v{mx}, v{RD}, v{RD+2}")
        for w in range(2, NSW):
            a(f"v_max_f32 v{mx}, v{mx}, v{RD+2*w}")
        a(f"v_mov_b32 v{l}, 0")
        for w in range(NSW):
            a(f"v_sub_f32 v{t0}, v{RD+2*w}, v{mx}")
            a(f"v_mul_f32 v{t0}, s{S_LOG2E}, v{t0}")
            a(f"v_exp_f32 v{t0}, v{t0}")
            a(f"v_fma_f32 v{l}, v{t0}, v{RD+2*w+1}, v{l}")
        if NH == 4:
            a(f"ds_write_b64 v{hd}, v[{mx}:{mx+1}] offset:{L_STAT}")
        pa, rl = X0 + 4, X0 + 5
        if NH == 1:
            a(f"""
            v_lshrrev_b32 v{pa}, 4, v2
            v_lshlrev_b32 v{pa}, 4, v{pa}
            v_bfe_u32 v{t0}, v2, 3, 1
            v_lshl_add_u32 v{pa}, v{t0}, 6, v{pa}
            v_and_b32 v{t0}, 7, v2
            v_lshl_add_u32 v{pa}, v{t0}, 1, v{pa}
            v_rcp_f32 v{rl}, v{l}
            """)
        else:
            a(f"""
            v_lshrrev_b32 v{pa}, 4, v2
            v_lshlrev_b32 v{pa}, 4, v{pa}
            v_bfe_u32 v{t0}, v2, 2, 2
            v_lshl_add_u32 v{pa}, v{t0}, 6, v{pa}
            v_and_b32 v{t0}, 3, v2
            v_lshl_add_u32 v{pa}, v{t0}, 1, v{pa}
            """)
        a(f"""
        s_lshl_b32 s{S_T1}, s{S_WAVE}, 11
        v_add_u32 v{pa}, s{S_T1}, v{pa}
        """)
        for i in range(NS):
            a(f"v_sub_f32 v{t0}, v{S+i}, v{mx}")
            a(f"v_mul_f32 v{t0}, s{S_LOG2E}, v{t0}")
            a(f"v_exp_f32 v{t0}, v{t0}")
            if NH == 1:
                a(f"v_mul_f32 v{t0}, v{t0}, v{rl}")
                off = L_P + i * 128
            else:
                off = L_P + (i // 2) * 256 + (i % 2) * 8
            a(f"v_cvt_pk_bf16_f32 v{t0}, v{t0}, v{t0}")
            a(f"ds_write_b16 v{pa}, v{t0} offset:{off}")
        pr = 7
        a(f"""
        v_lshrrev_b32 v{pr}, 4, v2
        v_lshlrev_b32 v{pr}, 4, v{pr}
        """)
        if NH == 4:
            a(f"""
            v_and_b32 v{t0}, 3, v2
            v_lshl_add_u32 v{pr}, v{t0}, 6, v{pr}
            """)
        a(f"v_add_u32 v{pr}, s{S_T1}, v{pr}")
        a("s_waitcnt lgkmcnt(0)")
        zero(a, ACC, 32)
        stamp(a, V_ST_STREAM, li * 8 + 2, True)
        for m in range(NK):
            n = p0 + NK + m
            pre_consume(n)
            tile, t = m // 8, m % 8
            if t == 0:
                pb = PB + 4 * (tile % 2)
                a(f"ds_read_b128 v[{pb}:{pb+3}], v{pr} offset:{L_P + tile * 64 * NH}")
            if t % 2 == 1:
                wait_for(n - 1)
                wait_for(n)
                perm_pair(a, SLR(n - 1), SLR(n), TMP, t // 2)
                release(n - 1)
                release(n)
                if t == 7:
                    a("s_waitcnt lgkmcnt(0)")
                    mfma8(a, TMP, PB + 4 * (tile % 2), ACC)
        da, t1 = 12, 13
        a(f"""
        v_and_b32 v{t1}, 15, v2
        v_cmp_gt_u32 vcc, {NH}, v{t1}
        v_lshlrev_b32 v{da}, 9, v{t1}
        v_lshrrev_b32 v{t1}, 4, v2
        v_lshl_add_u32 v{da}, v{t1}, 7, v{da}
        s_lshl_b32 s{S_T1}, s{S_WAVE}, 11
        v_add_u32 v{da}, s{S_T1}, v{da}
        s_mov_b64 s[90:91], vcc
        """)
        dump_acc(a, ACC, da, 90, L_ORED)
        a(f"""
        s_lshl_b32 s{S_T1}, s{S_WAVE}, 2
        v_mov_b32 v{t1}, s{S_T1}
        s_waitcnt lgkmcnt(0)
        """)
        lds_set(a, F_E1, ep, t1, da)
        stamp(a, V_ST_STREAM, li * 8 + 3, True)
        if not isA:
            pass
        run_ahead(p0 + 2 * NK)
        stamp(a, V_ST_STREAM, li * 8 + 4, True)
        if isA:
            a(f"""
            s_cmp_eq_u32 s{S_ITER}, 1
            s_cselect_b32 s{SRD_E+2}, 0, s{SRD_E+2}
            s_cselect_b32 s{SRD_G+2}, 0, s{SRD_G+2}
            """)
    assert st["issued"] == TOT + D + NL + MDIR
    a(f"""
    s_add_u32 s{S_ITER}, s{S_ITER}, 1
    s_cmp_lt_u32 s{S_ITER}, 2
    s_nop 7
    s_cbranch_scc1 {loop}
    """)
    stamp_out(a, V_ST_STREAM)
    a("s_endpgm")


def gen_service(a):
    W = [64 + 4 * i for i in range(32)]
    TMP, ACC, PB = 192, 224, 48
    GR = [160 + i for i in range(32)] + [224 + i for i in range(32)]
    AOP = [TMP, W[0], W[8], W[16]]
    VZ, VX0, VX1 = 5, 6, 7
    W4 = 8
    SW = S_T0
    a(f"""
    s_setprio 2
    s_sub_u32 s{SW}, s{S_WAVE}, 4
    v_mov_b32 v{VZ}, 0
    v_and_b32 v3, 15, v2
    v_cmp_eq_u32 s[{S_M0}:{S_M0+1}], 0, v3
    v_cmp_eq_u32 s[{S_M1}:{S_M1+1}], 0, v2
    """)
    a(f"""
    v_lshrrev_b32 v14, 4, v2
    v_lshlrev_b32 v12, 13, v14
    v_lshl_add_u32 v12, v3, 4, v12
    v_lshlrev_b32 v13, 10, v14
    v_lshl_add_u32 v13, v3, 4, v13
    """)
    a(f"""
    s_lshl_b32 s{S_T1}, s{SW}, 8
    v_lshlrev_b32 v15, 4, v14
    v_add_u32 v15, s{S_T1}, v15
    v_lshlrev_b32 v16, 7, v14
    v_lshlrev_b32 v17, 3, v2
    """)
    a(f"s_lshl_b32 s{S_T1}, s{S_B}, 20")
    srd(a, SRD_B, P_WS, f"s{S_T1}", 32 * WG_STRIDE)
    a(f"""
    s_and_b32 s{S_WOFF}, s2, 31
    s_lshl_b32 s{S_WOFF}, s{S_WOFF}, 15
    """)

    def issue_wq(L):
        isA = L % 2 == 0
        a(f"""
        s_and_b32 s{S_T1}, s2, 31
        s_lshl_b32 s{S_T1}, s{S_T1}, 8
        """)
        srd(a, SRD_C, P_AWQ if isA else P_BWQ, f"s{S_T1}", 512 * 8192 - 7936)
        a(f"s_lshl_b32 s{S_T2}, s{SW}, 20")
        for i in range(32):
            a(f"buffer_load_dwordx4 v[{W[i]}:{W[i]+3}], v12, s[{SRD_C}:{SRD_C+3}], s{S_T2} offen")
            if i < 31:
                a(f"s_add_u32 s{S_T2}, s{S_T2}, 32768")

    def issue_wo(L):
        isA = L % 2 == 0
        a(f"""
        s_and_b32 s{S_T1}, s2, 31
        s_lshl_b32 s{S_T1}, s{S_T1}, 17
        """)
        srd(a, SRD_C, P_AWO if isA else P_BWO, f"s{S_T1}", 131072)
        a(f"s_lshl_b32 s{S_T2}, s{SW}, 8")
        for i in range(32):
            a(f"buffer_load_dwordx4 v[{W[i]}:{W[i]+3}], v13, s[{SRD_C}:{SRD_C+3}], s{S_T2} offen")
            if i < 31:
                a(f"s_add_u32 s{S_T2}, s{S_T2}, 4096")

    def preperm():
        for tile in range(4):
            for u in range(4):
                n = tile * 8 + 2 * u + 1
                perm_pair(a, W[n - 1], W[n], AOP[tile], u)

    def gemv32():
        for t in range(4):
            a(f"ds_read_b128 v[{PB+4*t}:{PB+4*t+3}], v15 offset:{L_SP + t*64}")
        zero(a, ACC, 32)
        a("s_waitcnt lgkmcnt(0)")
        for tile in range(4):
            mfma8(a, AOP[tile], PB + 4 * tile, ACC)

    def write_p2(v0r, v1r, t):
        a(f"""
        v_cvt_pk_bf16_f32 v{t}, v{v0r}, v{v1r}
        v_lshrrev_b32 v{t+1}, 4, v2
        v_lshlrev_b32 v{t+1}, 6, v{t+1}
        v_and_b32 v{t+2}, 1, v2
        v_lshl_add_u32 v{t+1}, v{t+2}, 5, v{t+1}
        v_bfe_u32 v{t+2}, v2, 1, 3
        v_lshl_add_u32 v{t+1}, v{t+2}, 1, v{t+1}
        s_lshl_b32 s{S_T1}, s{SW}, 8
        v_add_u32 v{t+1}, s{S_T1}, v{t+1}
        ds_write_b16 v{t+1}, v{t} offset:{L_SP}
        ds_write_b16_d16_hi v{t+1}, v{t} offset:{L_SP + 16}
        s_waitcnt lgkmcnt(0)
        """)

    def part_gather(L):
        lab, done = uid("ps"), uid("psd")
        a(f"""
        v_and_b32 v18, 31, v2
        v_lshlrev_b32 v18, 15, v18
        s_lshl_b32 s{S_T1}, s{SW}, 9
        s_add_u32 s{S_T1}, s{S_T1}, {O_PART + L*2048}
        s_nop 1
        """)
        a.label(lab)
        a(f"""
        buffer_load_dword v19, v18, s[{SRD_B}:{SRD_B+3}], s{S_T1} offen sc1
        s_waitcnt vmcnt(0)
        v_cmp_eq_u32 vcc, 0, v19
        s_nop 1
        s_cbranch_vccz {done}
        s_sleep 2
        """)
        budget_loop(a, lab)
        a.label(done)
        stamp(a, V_ST_SERV, (L + 1) * 10 + 0)
        lab, done = uid("pf"), uid("pfd")
        a.label(lab)
        a(f"s_mov_b32 s{S_T2}, s{S_T1}")
        for h in range(32):
            a(f"buffer_load_dwordx2 v[{GR[2*h]}:{GR[2*h+1]}], v17, s[{SRD_B}:{SRD_B+3}], s{S_T2} offen sc1")
            if h < 31:
                a(f"s_add_u32 s{S_T2}, s{S_T2}, {WG_STRIDE}")
        a("s_waitcnt vmcnt(0)")
        a(f"v_and_b32 v19, v{GR[0]}, v{GR[1]}")
        for i in range(2, 64):
            a(f"v_and_b32 v19, v19, v{GR[i]}")
        a(f"""
        v_and_b32 v19, 1, v19
        v_cmp_eq_u32 vcc, 0, v19
        s_nop 1
        s_cbranch_vccz {done}
        s_sleep 1
        """)
        budget_loop(a, lab)
        a.label(done)
        G = GR[0]
        for h in range(1, 32):
            a(f"v_add_f32 v{G}, v{G}, v{GR[2*h]}")
            a(f"v_add_f32 v{G+1}, v{G+1}, v{GR[2*h+1]}")
        bf16r(a, G, G)
        bf16r(a, G + 1, G + 1)
        a(f"v_add_f32 v{VX0}, v{VX0}, v{G}")
        a(f"v_add_f32 v{VX1}, v{VX1}, v{G+1}")
        bf16r(a, VX0, VX0)
        bf16r(a, VX1, VX1)

    if STAMP:
        a(f"v_mov_b32 v{V_ST_SERV}, 0")
        stamp(a, V_ST_SERV, 63)
    a(f"s_lshl_b32 s{S_T1}, s{S_B}, 10")
    srd(a, SRD_A, P_AX, f"s{S_T1}", 1024)
    a(f"""
    v_subrev_u32 v18, 256, v0
    v_lshlrev_b32 v18, 2, v18
    buffer_load_dword v19, v18, s[{SRD_A}:{SRD_A+3}], 0 offen
    """)
    issue_wq(0)
    a(f"""
    s_waitcnt vmcnt(32)
    v_lshlrev_b32 v{VX0}, 16, v19
    v_and_b32 v{VX1}, 0xffff0000, v19
    """)

    for L in range(4):
        isA = L % 2 == 0
        Li = L // 2
        ep = L + 1
        if L > 0:
            part_gather(L - 1)
        stamp(a, V_ST_SERV, L * 10 + 1)
        a(f"""
        v_subrev_u32 v18, 256, v0
        v_lshlrev_b32 v18, 3, v18
        ds_write_b64 v18, v[{VX0}:{VX1}] offset:{L_XBUF}
        s_lshl_b32 s{S_T1}, s{SW}, 2
        v_mov_b32 v19, s{S_T1}
        s_waitcnt lgkmcnt(0)
        """)
        lds_set(a, F_X, ep, 19, 20)
        lds_wait(a, F_X, 4, ep, VZ, W4)
        a(f"""
        v_lshlrev_b32 v18, 5, v2
        ds_read_b128 v[24:27], v18 offset:{L_XBUF}
        ds_read_b128 v[28:31], v18 offset:{L_XBUF + 16}
        s_waitcnt lgkmcnt(0)
        v_add_f32 v20, v24, v25
        """)
        for i in range(26, 32):
            a(f"v_add_f32 v20, v20, v{i}")
        wave_allreduce(a, 20, 22, "v_add_f32")
        a("v_mul_f32 v20, 0x3b000000, v20")
        a("v_mov_b32 v21, 0")
        for i in range(24, 32):
            a(f"v_sub_f32 v22, v{i}, v20")
            a("v_fma_f32 v21, v22, v22, v21")
        wave_allreduce(a, 21, 22, "v_add_f32")
        a("v_mul_f32 v21, 0x3b000000, v21")
        bf16r(a, 20, 20)
        bf16r(a, 21, 21)
        a("v_add_f32 v21, 0x3727c5ac, v21")
        bf16r(a, 21, 21)
        a("v_sqrt_f32 v21, v21")
        bf16r(a, 21, 21)
        a("v_rcp_f32 v22, v21")
        for (xr, o) in ((VX0, 24), (VX1, 25)):
            a(f"v_sub_f32 v26, v{xr}, v20")
            bf16r(a, 26, 26)
            a(f"""
            v_mul_f32 v{o}, v26, v22
            v_fma_f32 v27, -v{o}, v21, v26
            v_fma_f32 v{o}, v27, v22, v{o}
            """)
        write_p2(24, 25, 28)
        stamp(a, V_ST_SERV, L * 10 + 2)
        if L == 0:
            a("s_waitcnt vmcnt(0)")
            preperm()
        stamp(a, V_ST_SERV, L * 10 + 3)
        gemv32()
        a(f"""
        s_lshl_b32 s{S_T1}, s{SW}, 9
        v_add_u32 v18, s{S_T1}, v16
        """)
        dump_acc(a, ACC, 18, S_M0, L_QRED)
        a(f"""
        s_lshl_b32 s{S_T1}, s{SW}, 2
        v_mov_b32 v19, s{S_T1}
        s_waitcnt lgkmcnt(0)
        """)
        lds_set(a, F_Q, ep, 19, 20)
        stamp(a, V_ST_SERV, L * 10 + 4)
        if L == 0:
            skipg, lab, done = uid("ng"), uid("gt"), uid("gtd")
            a(f"""
            s_cmp_lg_u32 s{SW}, 1
            s_cbranch_scc1 {skipg}
            """)
            srd(a, SRD_D, P_DBG, 0, 256)
            a(f"""
            s_lshl_b32 s{S_T1}, s{S_B}, 5
            v_mov_b32 v20, s{S_T1}
            s_nop 1
            """)
            a.label(lab)
            a(f"""
            buffer_load_dword v21, v20, s[{SRD_D}:{SRD_D+3}], 0 offen sc1
            s_waitcnt vmcnt(0)
            v_cmp_gt_u32 vcc, 32, v21
            s_nop 1
            s_cbranch_vccz {done}
            s_sleep 2
            """)
            budget_loop(a, lab)
            a.label(done)
            lds_set(a, F_G, 1, VZ, 20)
            a("s_nop 3")
            a.label(skipg)
        skip = uid("nq")
        a(f"""
        s_cmp_lg_u32 s{SW}, 0
        s_cbranch_scc1 {skip}
        """)
        lds_wait(a, F_Q, 4, ep, VZ, W4)
        for w in range(4):
            a(f"ds_read_b64 v[{24+2*w}:{25+2*w}], v17 offset:{L_QRED + w*512}")
        a("s_waitcnt lgkmcnt(0)")
        for w in range(1, 4):
            a(f"v_add_f32 v24, v24, v{24+2*w}")
            a(f"v_add_f32 v25, v25, v{25+2*w}")
        a("v_lshlrev_b32 v18, 2, v2")
        if not isA:
            a(f"""
            v_cvt_pk_bf16_f32 v24, v24, v25
            ds_write_b32 v18, v24 offset:{L_QAREA}
            """)
        else:
            bf16r(a, 24, 24)
            bf16r(a, 25, 25)
            if L == 0:
                lds_wait(a, F_Z, 1, 1, VZ, W4)
            a(f"""
            v_or_b32 v24, 1, v24
            v_or_b32 v25, 1, v25
            s_add_u32 s{S_T1}, s{S_WOFF}, {O_QX + Li*512}
            buffer_store_dwordx2 v[24:25], v17, s[{SRD_B}:{SRD_B+3}], s{S_T1} offen sc1
            """)
            if L == 0:
                lds_wait(a, F_G, 1, 1, VZ, W4)
            lab, done = uid("qx"), uid("qxd")
            a(f"""
            s_and_b32 s{S_T1}, s{S_WOFF}, {(~(4*WG_STRIDE - 1)) & 0xffffffff:#x}
            s_add_u32 s{S_T1}, s{S_T1}, {O_QX + Li*512}
            s_nop 1
            """)
            a.label(lab)
            a(f"s_mov_b32 s{S_T2}, s{S_T1}")
            for h in range(4):
                a(f"buffer_load_dwordx2 v[{24+2*h}:{25+2*h}], v17, s[{SRD_B}:{SRD_B+3}], s{S_T2} offen sc1")
                if h < 3:
                    a(f"s_add_u32 s{S_T2}, s{S_T2}, {WG_STRIDE}")
            if L == 0:
                pass
            a("s_waitcnt vmcnt(0)")
            a("v_and_b32 v19, v24, v25")
            for i in range(26, 32):
                a(f"v_and_b32 v19, v19, v{i}")
            a(f"""
            v_and_b32 v19, 1, v19
            v_cmp_eq_u32 vcc, 0, v19
            s_nop 1
            s_cbranch_vccz {done}
            s_sleep 1
            """)
            budget_loop(a, lab)
            a.label(done)
            for h in range(4):
                a(f"v_perm_b32 v20, v{25+2*h}, v{24+2*h}, s{S_SELHI}")
                a(f"ds_write_b32 v18, v20 offset:{L_QAREA + h*256}")
        a("s_waitcnt lgkmcnt(0)")
        lds_set(a, F_QRDY, ep, VZ, 20)
        stamp(a, V_ST_SERV, L * 10 + 5)
        a("s_nop 3")
        a.label(skip)
        issue_wo(L)
        a("s_waitcnt vmcnt(0)")
        preperm()
        lds_wait(a, F_E1, 4, ep, VZ, W4)
        stamp(a, V_ST_SERV, L * 10 + 6)
        if not isA:
            for w in range(NSW):
                a(f"ds_read_b64 v[{24+2*w}:{25+2*w}], v17 offset:{L_ORED + w*2048}")
            a("s_waitcnt lgkmcnt(0)")
            for w in range(1, NSW):
                a(f"v_add_f32 v24, v24, v{24+2*w}")
                a(f"v_add_f32 v25, v25, v{25+2*w}")
        else:
            a(f"""
            s_lshl_b32 s{S_T1}, s{SW}, 9
            v_add_u32 v18, s{S_T1}, v17
            s_lshl_b32 s{S_T1}, s{SW}, 3
            v_mov_b32 v19, s{S_T1}
            """)
            for w in range(NSW):
                a(f"ds_read_b64 v[{24+2*w}:{25+2*w}], v18 offset:{L_ORED + w*2048}")
            a(f"ds_read_b64 v[32:33], v19 offset:{L_STAT}")
            a("s_waitcnt lgkmcnt(0)")
            for w in range(1, NSW):
                a(f"v_add_f32 v24, v24, v{24+2*w}")
                a(f"v_add_f32 v25, v25, v{25+2*w}")
            a(f"""
            v_or_b32 v24, 1, v24
            v_or_b32 v25, 1, v25
            v_or_b32 v32, 1, v32
            v_or_b32 v33, 1, v33
            s_and_b32 s{S_T1}, s{S_WOFF}, {(~(4*WG_STRIDE - 1)) & 0xffffffff:#x}
            s_lshl_b32 s{S_T2}, s{SW}, 15
            s_add_u32 s{S_T1}, s{S_T1}, s{S_T2}
            s_and_b32 s{S_T2}, s2, 3
            s_lshl_b32 s{S_T2}, s{S_T2}, 10
            s_add_u32 s{S_T1}, s{S_T1}, s{S_T2}
            s_add_u32 s{S_T1}, s{S_T1}, {O_OX + Li*4096}
            buffer_store_dwordx2 v[24:25], v17, s[{SRD_B}:{SRD_B+3}], s{S_T1} offen sc1
            s_mov_b64 exec, s[{S_M1}:{S_M1+1}]
            buffer_store_dwordx2 v[32:33], v{VZ}, s[{SRD_B}:{SRD_B+3}], s{S_T1} offen offset:512 sc1
            s_mov_b64 exec, -1
            s_add_u32 s{S_T1}, s{S_WOFF}, {O_OX + Li*4096}
            s_nop 1
            """)
            lab, done = uid("ox"), uid("oxd")
            a.label(lab)
            for s in range(4):
                a(f"buffer_load_dwordx2 v[{24+2*s}:{25+2*s}], v17, s[{SRD_B}:{SRD_B+3}], s{S_T1} offen offset:{s*1024} sc1")
                a(f"buffer_load_dwordx2 v[{32+2*s}:{33+2*s}], v{VZ}, s[{SRD_B}:{SRD_B+3}], s{S_T1} offen offset:{s*1024+512} sc1")
            a("s_waitcnt vmcnt(0)")
            a("v_and_b32 v19, v24, v25")
            for i in range(26, 40):
                a(f"v_and_b32 v19, v19, v{i}")
            a(f"""
            v_and_b32 v19, 1, v19
            v_cmp_eq_u32 vcc, 0, v19
            s_nop 1
            s_cbranch_vccz {done}
            s_sleep 1
            """)
            budget_loop(a, lab)
            a.label(done)
            a(f"""
            v_max_f32 v40, v32, v34
            v_max3_f32 v40, v40, v36, v38
            v_mov_b32 v41, 0
            v_mov_b32 v42, 0
            v_mov_b32 v43, 0
            """)
            for s in range(4):
                a(f"""
                v_sub_f32 v44, v{32+2*s}, v40
                v_mul_f32 v44, s{S_LOG2E}, v44
                v_exp_f32 v44, v44
                v_fma_f32 v41, v44, v{33+2*s}, v41
                v_fma_f32 v42, v44, v{24+2*s}, v42
                v_fma_f32 v43, v44, v{25+2*s}, v43
                """)
            a(f"""
            v_rcp_f32 v41, v41
            v_mul_f32 v24, v42, v41
            v_mul_f32 v25, v43, v41
            """)
        stamp(a, V_ST_SERV, L * 10 + 7)
        write_p2(24, 25, 28)
        gemv32()
        a(f"""
        s_lshl_b32 s{S_T1}, s{SW}, 9
        v_add_u32 v18, s{S_T1}, v16
        """)
        dump_acc(a, ACC, 18, S_M0, L_TR)
        a(f"""
        v_add_u32 v18, s{S_T1}, v17
        s_waitcnt lgkmcnt(0)
        ds_read_b64 v[24:25], v18 offset:{L_TR}
        s_add_u32 s{S_T1}, s{S_T1}, s{S_WOFF}
        s_add_u32 s{S_T1}, s{S_T1}, {O_PART + L*2048}
        s_waitcnt lgkmcnt(0)
        v_or_b32 v24, 1, v24
        v_or_b32 v25, 1, v25
        buffer_store_dwordx2 v[24:25], v17, s[{SRD_B}:{SRD_B+3}], s{S_T1} offen sc1
        """)
        stamp(a, V_ST_SERV, L * 10 + 8)
        if L < 3:
            issue_wq(L + 1)
            a("s_waitcnt vmcnt(0)")
            preperm()
    if STAMP:
        lab = uid("fin")
        a(f"""
        s_cmp_eq_u32 s{S_WOFF}, 0
        s_cbranch_scc1 {lab}
        """)
        stamp_out(a, V_ST_SERV)
        a("s_endpgm")
        a.label(lab)
    a(f"""
    s_cmp_lg_u32 s{S_WOFF}, 0
    s_cbranch_scc1 L_end
    """)
    part_gather(3)
    a(f"s_lshl_b32 s{S_T1}, s{S_B}, 10")
    srd(a, SRD_A, P_OUT, f"s{S_T1}", 1024)
    a(f"""
    v_subrev_u32 v18, 256, v0
    v_lshlrev_b32 v18, 2, v18
    v_perm_b32 v19, v{VX1}, v{VX0}, s{S_SELHI}
    buffer_store_dword v19, v18, s[{SRD_A}:{SRD_A+3}], 0 offen
    """)
    stamp(a, V_ST_SERV, 51)
    stamp_out(a, V_ST_SERV)
    a("s_endpgm")


def main():
    a = Asm()
    name = NAME + "_kernel"
    a(f"""
    s_cmp_ge_u32 s2, 256
    s_cbranch_scc1 L_end
    s_load_dwordx16 s[16:31], s[0:1], 0
    s_load_dwordx8 s[32:39], s[0:1], 64
    s_load_dwordx2 s[40:41], s[0:1], 96
    v_lshrrev_b32 v1, 6, v0
    v_and_b32 v2, 63, v0
    v_readfirstlane_b32 s{S_WAVE}, v1
    s_mov_b32 s{S_SELLO}, 0x05040100
    s_mov_b32 s{S_SELHI}, 0x07060302
    s_mov_b32 s{S_LOG2E}, {LOG2E:#x}
    s_mov_b32 s{S_SCALE}, {SCALE:#x}
    s_mov_b32 s{S_BUDGET}, 400000
    s_lshr_b32 s{S_B}, s2, 5
    v_and_b32 v3, 31, v2
    v_lshlrev_b32 v3, 2, v3
    v_mov_b32 v4, 0
    ds_write_b32 v3, v4
    s_waitcnt lgkmcnt(0)
    s_barrier
    s_cmp_ge_u32 s{S_WAVE}, 4
    s_cbranch_scc1 L_service
    """)
    gen_stream(a)
    a.label("L_service")
    gen_service(a)
    a.label("L_end")
    a("s_endpgm")
    out = HDR
    out += f"; @launch grid=(256,1,1) block=(512,1,1) lds={LDS_TOTAL}\n"
    out += '.amdgcn_target "amdgcn-amd-amdhsa--gfx950"\n.text\n'
    out += f".globl {name}\n.p2align 8\n.type {name},@function\n{name}:\n" + a.text()
    out += '.section .rodata,"a"\n.p2align 6\n'
    out += f""".amdhsa_kernel {name}
  .amdhsa_next_free_vgpr 256
  .amdhsa_next_free_sgpr 96
  .amdhsa_accum_offset 256
  .amdhsa_group_segment_fixed_size 0
  .amdhsa_kernarg_size 104
  .amdhsa_user_sgpr_count 2
  .amdhsa_user_sgpr_kernarg_segment_ptr 1
  .amdhsa_system_sgpr_workgroup_id_x 1
  .amdhsa_float_denorm_mode_32 3
.end_amdhsa_kernel
"""
    path = sys.argv[1] if len(sys.argv) > 1 else f"cdna_kernels/{NAME}.s"
    open(path, "w").write(out)
    print("wrote", path, len(out), "bytes")


main()
```

```python
import sys, os
sys.path.insert(0, os.path.dirname(__file__))
from asmlib import Asm

NAME = "interleave_layers__gqa_block_cached__mha_block_cached__decode"
HDR = open("cdna_kernels/%s.s.ref" % NAME).read().split("; Override launch")[0]

D = int(os.environ.get("DEPTH", "8"))
RING = int(os.environ.get("RING", "40"))
CATCH = int(os.environ.get("CATCH", "4"))
NL = int(os.environ.get("NL", "30"))
NSTG = 4
MDIR = RING - D - NSTG
XSM = int(os.environ.get("XSM", "8"))
NSW = 4

P_AX, P_AK, P_AV, P_AWQ, P_AWO, P_BX, P_BK, P_BV, P_BWQ, P_BWO, P_OUT, P_DBG, P_WS = [16 + 2 * i for i in range(13)]
WG_SH = 16
WG_STRIDE = 1 << WG_SH
O_PART = 0
O_QX = 8192
O_OX = 10240
O_PD = 18432
O_PS = 51200
O_CNT = 51712
O_END = 52224
POOL_A = int(os.environ.get("POOL_A", "0"))
POOL_B = int(os.environ.get("POOL_B", "1"))
NU = 16

S_WAVE = 42
S_SELLO, S_SELHI = 43, 44
S_T0, S_T1, S_T2, S_T3 = 45, 46, 47, 48
S_BUDGET = 49
S_EPOCH = 50
S_B = 51
SRD_A, SRD_B, SRD_C, SRD_D, SRD_E, SRD_F, SRD_G = 52, 56, 60, 64, 76, 80, 92
S_M0, S_M1 = 68, 70
S_LOG2E = 72
S_SCALE = 73
S_ITER = 74
S_WOFF = 75

LOG2E = 0x3fb8aa3b
SCALE = 0x3db504f3

F_X, F_Q, F_E1, F_S, F_QRDY, F_Z, F_G, F_G2 = 0, 16, 32, 48, 64, 68, 72, 76
L_RED = 128
L_STAT = 256
L_XBUF = 512
L_QRED = 2560
L_QAREA = 4608
L_SP = 5632
L_TR = 6656
L_P = 9216
L_ORED = 17408
L_PT = 25600
L_STG = 33792
LDS_TOTAL = L_STG + 4 * NL * 1024
S_STG = 87
SRD_PK, SRD_PV, SRD_W = 4, 8, 12
S_UOFF, S_UDST, S_NOFF, S_NDST, S_IDX, S_UT = 96, 97, 98, 99, 100, 101
S_L = 3

_uid = [0]
STAMP = int(os.environ.get("STAMP", "0"))
V_ST_STREAM = 15
V_ST_SERV = 47


def stamp(a, vreg, idx, dyn=False):
    if not STAMP:
        return
    a("s_memrealtime s[84:85]")
    a("s_waitcnt lgkmcnt(0)")
    if dyn:
        a(f"s_lshl_b32 s86, s{S_ITER}, 4")
        a(f"s_add_u32 m0, s86, {idx}")
        a("s_nop 3")
        a(f"v_writelane_b32 v{vreg}, s84, m0")
    else:
        a(f"v_writelane_b32 v{vreg}, s84, {idx}")


def stamp_out(a, vreg):
    if not STAMP:
        return
    a(f"""
    s_lshl_b32 s86, s2, 3
    s_add_u32 s86, s86, s{S_WAVE}
    s_lshl_b32 s86, s86, 8
    s_add_u32 s86, s86, 0x2000000
    """)
    srd(a, 88, P_WS, "s86", 256)
    a(f"""
    v_lshlrev_b32 v1, 2, v2
    buffer_store_dword v{vreg}, v1, s[88:91], 0 offen
    """)


def uid(p):
    _uid[0] += 1
    return f"L_{p}_{_uid[0]}"


def srd(a, r, p, off, size):
    a(f"""
    s_add_u32 s{r}, s{p}, {off}
    s_addc_u32 s{r+1}, s{p+1}, 0
    s_mov_b32 s{r+2}, {size:#x}
    s_mov_b32 s{r+3}, 0x20000
    """)


def bf16r(a, dst, src):
    a(f"v_cvt_pk_bf16_f32 v{dst}, v{src}, v{src}")
    a(f"v_lshlrev_b32 v{dst}, 16, v{dst}")


def wave_allreduce(a, v, t, op, bits=(0, 1, 2, 3, 4, 5)):
    for b in bits:
        if b == 0:
            a(f"{op}_dpp v{v}, v{v}, v{v} quad_perm:[1,0,3,2] row_mask:0xf bank_mask:0xf")
        elif b == 1:
            a(f"{op}_dpp v{v}, v{v}, v{v} quad_perm:[2,3,0,1] row_mask:0xf bank_mask:0xf")
        elif b == 2:
            a(f"{op}_dpp v{v}, v{v}, v{v} row_half_mirror row_mask:0xf bank_mask:0xf")
        elif b == 3:
            a(f"{op}_dpp v{v}, v{v}, v{v} row_mirror row_mask:0xf bank_mask:0xf")
        elif b == 4:
            a(f"v_mov_b32 v{t}, v{v}")
            a(f"v_permlane16_swap_b32 v{v}, v{t}")
            a(f"{op} v{v}, v{v}, v{t}")
        elif b == 5:
            a(f"v_mov_b32 v{t}, v{v}")
            a(f"v_permlane32_swap_b32 v{v}, v{t}")
            a(f"{op} v{v}, v{v}, v{t}")


def perm_pair(a, l0, l1, tmp, u):
    for w in range(4):
        a(f"v_perm_b32 v{tmp + 4*(2*w) + u}, v{l1 + w}, v{l0 + w}, s{S_SELLO}")
        a(f"v_perm_b32 v{tmp + 4*(2*w+1) + u}, v{l1 + w}, v{l0 + w}, s{S_SELHI}")


def mfma8(a, tmp, pb, acc):
    for e in range(8):
        a(f"v_mfma_f32_16x16x32_bf16 v[{acc+4*e}:{acc+4*e+3}], v[{tmp+4*e}:{tmp+4*e+3}], v[{pb}:{pb+3}], v[{acc+4*e}:{acc+4*e+3}]")


def zero(a, base, n):
    for i in range(n):
        a(f"v_mov_b32 v{base+i}, 0")


def dump_acc(a, acc, vaddr, maskreg, off=0):
    a(f"s_mov_b64 exec, s[{maskreg}:{maskreg+1}]")
    for e in range(8):
        for r in range(4):
            a(f"ds_write_b32 v{vaddr}, v{acc+4*e+r} offset:{off + (8*r+e)*4}")
    a("s_mov_b64 exec, -1")


def budget_loop(a, lab):
    a(f"""
    s_sub_u32 s{S_BUDGET}, s{S_BUDGET}, 1
    s_cmp_gt_i32 s{S_BUDGET}, 0
    s_cbranch_scc1 {lab}
    """)


def lds_set(a, off, epoch, vz, vt):
    a(f"v_mov_b32 v{vt}, {epoch}")
    a(f"ds_write_b32 v{vz}, v{vt} offset:{off}")


def lds_wait(a, off, n, epoch, vzero, vt):
    lab = uid("lw")
    done = uid("lwd")
    a("s_nop 1")
    a.label(lab)
    if n == 4:
        a(f"""
        ds_read_b128 v[{vt}:{vt+3}], v{vzero} offset:{off}
        s_waitcnt lgkmcnt(0)
        v_min_u32 v{vt}, v{vt}, v{vt+1}
        v_min3_u32 v{vt}, v{vt}, v{vt+2}, v{vt+3}
        """)
    else:
        a(f"""
        ds_read_b32 v{vt}, v{vzero} offset:{off}
        s_waitcnt lgkmcnt(0)
        """)
    a(f"""
    v_cmp_gt_u32 vcc, {epoch}, v{vt}
    s_nop 1
    s_cbranch_vccz {done}
    s_sleep 1
    """)
    budget_loop(a, lab)
    a.label(done)


def gen_stream(a):
    VOFF0, VOFF1, VZ = 3, 4, 5
    Q, T, S, X0 = 16, 32, 48, 64
    ACC, TMP, PB = 16, 48, 80
    SL0 = 88
    W4 = 8
    if STAMP:
        a(f"v_mov_b32 v{V_ST_STREAM}, 0")
        stamp(a, V_ST_STREAM, 63)
    a(f"s_lshl_b32 s{S_T1}, s2, 18")
    srd(a, SRD_A, P_AK, f"s{S_T1}", 1 << 18)
    srd(a, SRD_B, P_AV, f"s{S_T1}", 1 << 18)
    srd(a, SRD_E, P_AK, f"s{S_T1}", 1 << 18)
    srd(a, SRD_G, P_AV, f"s{S_T1}", 1 << 18)
    a(f"s_lshl_b32 s{S_T1}, s2, 20")
    srd(a, SRD_C, P_BK, f"s{S_T1}", 1 << 20)
    srd(a, SRD_D, P_BV, f"s{S_T1}", 1 << 20)
    a(f"""
    v_lshlrev_b32 v{VOFF0}, 4, v2
    v_add_u32 v{VOFF1}, 4096, v{VOFF0}
    v_mov_b32 v{VZ}, 0
    s_lshl_b32 s{S_WOFF}, s{S_WAVE}, 13
    v_and_b32 v6, 2, v2
    v_cmp_ne_u32 s[{S_M0}:{S_M0+1}], 0, v6
    v_and_b32 v6, 1, v2
    v_cmp_ne_u32 s[{S_M1}:{S_M1+1}], 0, v6
    s_mov_b32 s{S_ITER}, 0
    """)
    NKA = 48 if POOL_A else 64
    NKB = 192 if POOL_B else 256
    TOT = 2 * NKA + 2 * NKB
    a(f"s_lshl_b32 s{S_T1}, s{S_B}, {WG_SH + 5}")
    srd(a, SRD_W, P_WS, f"s{S_T1}", 32 * WG_STRIDE)
    PS0 = 8

    def lim_of(p):
        ls, le = lay(p)
        pooled = POOL_A if (ls % TOT) == 0 else POOL_B
        return (24, 60) if pooled else (D, 24)
    VSTG = 14
    a(f"""
    s_mul_i32 s{S_STG}, s{S_WAVE}, {NL * 1024}
    s_add_u32 s{S_STG}, s{S_STG}, {L_STG}
    v_add_u32 v{VSTG}, s{S_STG}, v{VOFF0}
    """)
    skipz = uid("nz")
    a(f"""
    s_cmp_lg_u32 s{S_WAVE}, 3
    s_cbranch_scc1 {skipz}
    s_lshl_b32 s{S_T1}, s2, {WG_SH}
    """)
    srd(a, SRD_F, P_WS, f"s{S_T1}", WG_STRIDE)
    a(f"""
    v_mov_b32 v16, 0
    v_mov_b32 v17, 0
    v_mov_b32 v18, 0
    v_mov_b32 v19, 0
    """)
    for i in range(O_END // 1024):
        if i * 1024 == O_QX:
            continue
        a(f"s_mov_b32 s{S_T2}, {i*1024}")
        a(f"buffer_store_dwordx4 v[16:19], v{VOFF0}, s[{SRD_F}:{SRD_F+3}], s{S_T2} offen sc1")
    a("s_waitcnt vmcnt(0)")
    srd(a, SRD_F, P_DBG, 0, 256)
    a(f"""
    s_lshl_b32 s{S_T1}, s{S_B}, 5
    v_mov_b32 v20, s{S_T1}
    v_mov_b32 v21, 1
    ds_write_b32 v{VZ}, v21 offset:{F_Z}
    s_mov_b64 exec, 1
    buffer_atomic_add v21, v20, s[{SRD_F}:{SRD_F+3}], 0 offen offset:4 sc1
    s_mov_b64 exec, -1
    s_nop 3
    """)
    a.label(skipz)

    starts = [0, 2 * NKA, TOT, TOT + 2 * NKA]
    free = list(range(RING))
    slot_of = {}
    ops = []
    st = {"issued": 0}

    def lay(p):
        for i in range(len(starts) - 1):
            if starts[i] <= p < starts[i + 1]:
                return starts[i], starts[i + 1]
        raise ValueError

    def is_staged(p):
        ls, _ = lay(p)
        return D <= p - ls < D + NL

    def staged_pending(n):
        ls, _ = lay(n)
        return any((p not in slot_of) for p in range(max(n, ls + D), ls + D + NL))

    def take_slot(p):
        ls, le = lay(p)
        rel = p - ls
        if rel < D:
            sl = rel
        elif D + NL <= rel < D + NL + MDIR:
            sl = D + rel - D - NL
        else:
            lim, far = lim_of(p)
            cand = [x for x in free if (x >= lim or le - p > far)]
            sl = min(cand)
        assert sl in free, (p, sl, free)
        free.remove(sl)
        slot_of[p] = sl
        return sl

    def release(p):
        free.append(slot_of[p])

    def SLR(p):
        return SL0 + 4 * slot_of[p]

    def issue(n):
        wrap = n >= TOT
        p = n % TOT
        if p < NKA:
            sr, m = (SRD_E if wrap else SRD_A), p
        elif p < 2 * NKA:
            sr, m = (SRD_G if wrap else SRD_B), p - NKA
        elif p < 2 * NKA + NKB:
            sr, m = SRD_C, p - 2 * NKA
        else:
            sr, m = SRD_D, p - 2 * NKA - NKB
        tile, t = m // 8, m % 8
        if t == 0:
            a(f"s_add_u32 s{S_T3}, s{S_WOFF}, {tile * NSW * 8192}")
        vo = VOFF0 if t < 4 else VOFF1
        if is_staged(n):
            k = n - lay(n)[0] - D
            a(f"s_add_u32 m0, s{S_STG}, {(k - t % 4) * 1024}")
            a(f"buffer_load_dwordx4 v{vo}, s[{sr}:{sr+3}], s{S_T3} offen offset:{(t%4)*1024} nt lds")
        else:
            sl = SL0 + 4 * take_slot(n)
            a(f"buffer_load_dwordx4 v[{sl}:{sl+3}], v{vo}, s[{sr}:{sr+3}], s{S_T3} offen offset:{(t%4)*1024} nt")
        ops.append(n)

    def restore_t3():
        n = st["issued"]
        p = n % TOT
        if p < NKA:
            m = p
        elif p < 2 * NKA:
            m = p - NKA
        elif p < 2 * NKA + NKB:
            m = p - 2 * NKA
        else:
            m = p - 2 * NKA - NKB
        a(f"s_add_u32 s{S_T3}, s{S_WOFF}, {(m // 8) * NSW * 8192}")

    def can_issue(n_cons):
        i = st["issued"]
        if is_staged(i):
            return True
        ls, le = lay(i)
        lim, far = lim_of(i)
        cand = [x for x in free if (x >= lim or le - i > far)] if (i - ls) >= D else free
        reserve = NSTG if staged_pending(n_cons) else 0
        return len(cand) > reserve

    def do_issue(paced):
        if paced:
            a(f"s_waitcnt vmcnt({D-1})")
        issue(st["issued"])
        st["issued"] += 1

    def run_ahead(end):
        while st["issued"] - end < D + NL + MDIR:
            do_issue(st["issued"] - end >= D)

    run_ahead(0)

    def rs_bank(lo, hi, bit):
        if bit == 3:
            a(f"v_add_f32_dpp v{lo}, v{lo}, v{lo} row_ror:8 row_mask:0xf bank_mask:0x3")
            a(f"v_add_f32_dpp v{lo}, v{hi}, v{hi} row_ror:8 row_mask:0xf bank_mask:0xc")
        else:
            a(f"v_add_f32_dpp v{lo}, v{lo}, v{lo} row_shl:4 row_mask:0xf bank_mask:0x5")
            a(f"v_add_f32_dpp v{lo}, v{hi}, v{hi} row_shr:4 row_mask:0xf bank_mask:0xa")

    def rs_quad(lo, hi, bit, dst=None):
        qp = "[2,3,0,1]" if bit == 1 else "[1,0,3,2]"
        m = S_M0 if bit == 1 else S_M1
        dst = lo if dst is None else dst
        a(f"v_add_f32_dpp v{lo}, v{lo}, v{lo} quad_perm:{qp} row_mask:0xf bank_mask:0xf")
        a(f"v_add_f32_dpp v{hi}, v{hi}, v{hi} quad_perm:{qp} row_mask:0xf bank_mask:0xf")
        a(f"v_cndmask_b32 v{dst}, v{lo}, v{hi}, s[{m}:{m+1}]")

    def reduce16(dst):
        for i in range(8):
            rs_bank(T + i, T + i + 8, 3)
        for i in range(4):
            rs_bank(T + i, T + i + 4, 2)
        for i in range(2):
            rs_quad(T + i, T + i + 2, 1)
        rs_quad(T, T + 1, 0, dst=dst)
        bf16r(a, dst, dst)
        a(f"v_mul_f32 v{dst}, s{S_SCALE}, v{dst}")
        bf16r(a, dst, dst)

    cnt = {"k": 0}

    def pre_consume(n):
        dist = st["issued"] - n
        if dist <= D:
            assert can_issue(n)
            do_issue(False)
        else:
            cnt["k"] += 1
            if cnt["k"] % CATCH == 0 and can_issue(n):
                do_issue(True)

    def wait_op(n):
        a(f"s_waitcnt vmcnt({min(63, len(ops) - 1 - ops.index(n))})")

    def wait_for(n):
        if is_staged(n):
            if n not in slot_of:
                ls, _ = lay(n)
                batch = [p for p in range(n, min(n + NSTG, ls + D + NL))]
                wait_op(batch[-1])
                for p in batch:
                    sl = SL0 + 4 * take_slot(p)
                    a(f"ds_read_b128 v[{sl}:{sl+3}], v{VSTG} offset:{(p - ls - D) * 1024}")
                a("s_waitcnt lgkmcnt(0)")
        else:
            wait_op(n)

    loop = "L_stream_loop"
    a("s_nop 7")
    a.label(loop)
    for li, (isA, p0) in enumerate(((True, 0), (False, 2 * NKA))):
        NH = 4 if isA else 1
        NK = NKA if isA else NKB
        NT = NK // 8
        a(f"s_lshl_b32 s{S_EPOCH}, s{S_ITER}, 1")
        a(f"s_add_u32 s{S_EPOCH}, s{S_EPOCH}, {li + 1}")
        ep = f"s{S_EPOCH}"
        lds_wait(a, F_QRDY, 1, ep, VZ, W4)
        stamp(a, V_ST_STREAM, li * 8 + 0, True)
        a(f"""
        v_and_b32 v6, 15, v2
        v_lshlrev_b32 v6, 4, v6
        """)
        for h in range(NH):
            a(f"ds_read_b128 v[{Q+4*h}:{Q+4*h+3}], v6 offset:{L_QAREA + h*256}")
        a("s_waitcnt lgkmcnt(0)")
        cnt["k"] = 0
        for m in range(NK):
            n = p0 + m
            pre_consume(n)
            wait_for(n)
            sl = SLR(n)
            release(n)
            if NH == 1:
                i = m % 16
                tr = T + i
                for w in range(4):
                    a(f"v_dot2_f32_bf16 v{tr}, v{sl+w}, v{Q+w}, {'0' if w == 0 else 'v%d' % tr}")
                if i == 15:
                    reduce16(S + m // 16)
            else:
                tq = m % 4
                for w in range(4):
                    for h in range(4):
                        tr = T + h * 4 + tq
                        a(f"v_dot2_f32_bf16 v{tr}, v{sl+w}, v{Q+4*h+w}, {'0' if w == 0 else 'v%d' % tr}")
                if tq == 3:
                    reduce16(S + m // 4)
        NS = NK // 16 if NH == 1 else NK // 4
        pooled = POOL_A if isA else POOL_B
        for _ in range(XSM):
            if can_issue(p0 + NK):
                do_issue(False)
        stamp(a, V_ST_STREAM, li * 8 + 1, True)
        mx, l, t0 = X0, X0 + 1, X0 + 2
        a(f"v_max_f32 v{mx}, v{S}, v{S+1}")
        for i in range(2, NS):
            a(f"v_max_f32 v{mx}, v{mx}, v{S+i}")
        bits = (0, 1, 2, 3, 4, 5) if NH == 1 else (0, 1, 4, 5)
        wave_allreduce(a, mx, t0, "v_max_f32", bits)
        a(f"v_mov_b32 v{l}, 0")
        for i in range(NS):
            a(f"v_sub_f32 v{t0}, v{S+i}, v{mx}")
            a(f"v_mul_f32 v{t0}, s{S_LOG2E}, v{t0}")
            a(f"v_exp_f32 v{t0}, v{t0}")
            a(f"v_add_f32 v{l}, v{l}, v{t0}")
        wave_allreduce(a, l, t0, "v_add_f32", bits)
        hd = X0 + 3
        if NH == 4:
            a(f"v_bfe_u32 v{hd}, v2, 2, 2")
            a(f"v_lshlrev_b32 v{hd}, 3, v{hd}")
        else:
            a(f"v_mov_b32 v{hd}, 0")
        a(f"""
        s_lshl_b32 s{S_T1}, s{S_WAVE}, 5
        v_add_u32 v{t0}, s{S_T1}, v{hd}
        ds_write_b64 v{t0}, v[{mx}:{mx+1}] offset:{L_RED}
        s_lshl_b32 s{S_T1}, s{S_WAVE}, 2
        v_mov_b32 v{t0}, s{S_T1}
        s_waitcnt lgkmcnt(0)
        """)
        lds_set(a, F_S, ep, t0, t0 + 2)
        lds_wait(a, F_S, 4, ep, VZ, W4)
        RD = T
        for w in range(NSW):
            a(f"ds_read_b64 v[{RD+2*w}:{RD+2*w+1}], v{hd} offset:{L_RED + w*32}")
        a("s_waitcnt lgkmcnt(0)")
        a(f"v_max_f32 v{mx}, v{RD}, v{RD+2}")
        for w in range(2, NSW):
            a(f"v_max_f32 v{mx}, v{mx}, v{RD+2*w}")
        a(f"v_mov_b32 v{l}, 0")
        for w in range(NSW):
            a(f"v_sub_f32 v{t0}, v{RD+2*w}, v{mx}")
            a(f"v_mul_f32 v{t0}, s{S_LOG2E}, v{t0}")
            a(f"v_exp_f32 v{t0}, v{t0}")
            a(f"v_fma_f32 v{l}, v{t0}, v{RD+2*w+1}, v{l}")
        a(f"ds_write_b64 v{hd}, v[{mx}:{mx+1}] offset:{L_STAT}")
        pa, rl = X0 + 4, X0 + 5
        if NH == 1:
            a(f"""
            v_lshrrev_b32 v{pa}, 4, v2
            v_lshlrev_b32 v{pa}, 4, v{pa}
            v_bfe_u32 v{t0}, v2, 3, 1
            v_lshl_add_u32 v{pa}, v{t0}, 6, v{pa}
            v_and_b32 v{t0}, 7, v2
            v_lshl_add_u32 v{pa}, v{t0}, 1, v{pa}
            v_rcp_f32 v{rl}, v{l}
            """)
        else:
            a(f"""
            v_lshrrev_b32 v{pa}, 4, v2
            v_lshlrev_b32 v{pa}, 4, v{pa}
            v_bfe_u32 v{t0}, v2, 2, 2
            v_lshl_add_u32 v{pa}, v{t0}, 6, v{pa}
            v_and_b32 v{t0}, 3, v2
            v_lshl_add_u32 v{pa}, v{t0}, 1, v{pa}
            """)
        a(f"""
        s_lshl_b32 s{S_T1}, s{S_WAVE}, 11
        v_add_u32 v{pa}, s{S_T1}, v{pa}
        """)
        for i in range(NS):
            a(f"v_sub_f32 v{t0}, v{S+i}, v{mx}")
            a(f"v_mul_f32 v{t0}, s{S_LOG2E}, v{t0}")
            a(f"v_exp_f32 v{t0}, v{t0}")
            if NH == 1:
                if not pooled:
                    a(f"v_mul_f32 v{t0}, v{t0}, v{rl}")
                off = L_P + i * 128
            else:
                off = L_P + (i // 2) * 256 + (i % 2) * 8
            a(f"v_cvt_pk_bf16_f32 v{t0}, v{t0}, v{t0}")
            a(f"ds_write_b16 v{pa}, v{t0} offset:{off}")
        pr = 7
        a(f"""
        v_lshrrev_b32 v{pr}, 4, v2
        v_lshlrev_b32 v{pr}, 4, v{pr}
        """)
        if NH == 4:
            a(f"""
            v_and_b32 v{t0}, 3, v2
            v_lshl_add_u32 v{pr}, v{t0}, 6, v{pr}
            """)
        a(f"v_add_u32 v{pr}, s{S_T1}, v{pr}")
        a("s_waitcnt lgkmcnt(0)")
        zero(a, ACC, 32)
        stamp(a, V_ST_STREAM, li * 8 + 2, True)
        da, t1 = 12, 13

        def v_step(m, pre=None):
            n = p0 + NK + m
            if pre is None:
                pre_consume(n)
            else:
                pre()
            tile, t = m // 8, m % 8
            if t == 0:
                pb = PB + 4 * (tile % 2)
                a(f"ds_read_b128 v[{pb}:{pb+3}], v{pr} offset:{L_P + tile * 64 * NH}")
            if t % 2 == 1:
                wait_for(n - 1)
                wait_for(n)
                perm_pair(a, SLR(n - 1), SLR(n), TMP, t // 2)
                release(n - 1)
                release(n)
                if t == 7:
                    a("s_waitcnt lgkmcnt(0)")
                    mfma8(a, TMP, PB + 4 * (tile % 2), ACC)

        def dump_addr():
            a(f"""
            v_and_b32 v{t1}, 15, v2
            v_cmp_gt_u32 vcc, {NH}, v{t1}
            v_lshlrev_b32 v{da}, 9, v{t1}
            v_lshrrev_b32 v{t1}, 4, v2
            v_lshl_add_u32 v{da}, v{t1}, 7, v{da}
            s_lshl_b32 s{S_T1}, s{S_WAVE}, 11
            v_add_u32 v{da}, s{S_T1}, v{da}
            s_mov_b64 s[90:91], vcc
            """)

        def static_done():
            dump_addr()
            dump_acc(a, ACC, da, 90, L_ORED)
            a(f"""
            s_lshl_b32 s{S_T1}, s{S_WAVE}, 2
            v_mov_b32 v{t1}, s{S_T1}
            s_waitcnt lgkmcnt(0)
            """)
            lds_set(a, F_E1, ep, t1, da)
            stamp(a, V_ST_STREAM, li * 8 + 3, True)

        if not pooled:
            for m in range(NK):
                v_step(m)
            static_done()
        else:
            NPOOL = NU * (8 if isA else 32)
            hb = 3 if isA else 5
            a(f"""
            s_lshl_b32 s{S_L}, s{S_ITER}, 1
            s_add_u32 s{S_L}, s{S_L}, {li}
            s_lshl_b32 s{S_T1}, s{S_B}, {23 if isA else 25}
            """)
            srd(a, SRD_PK, P_AK if isA else P_BK, f"s{S_T1}", 1 << (23 if isA else 25))
            srd(a, SRD_PV, P_AV if isA else P_BV, f"s{S_T1}", 1 << (23 if isA else 25))

            def claim():
                a(f"""
                s_lshl_b32 s{S_UT}, s{S_L}, 2
                s_add_u32 s{S_UT}, s{S_UT}, {O_CNT}
                v_mov_b32 v1, 1
                s_mov_b64 exec, 1
                buffer_atomic_add v1, v{VZ}, s[{SRD_W}:{SRD_W+3}], s{S_UT} offen sc0 sc1
                s_mov_b64 exec, -1
                """)
                ops.append("claim")

            def decide(exit_label):
                wait_op("claim")
                ops.remove("claim")
                a(f"""
                v_readfirstlane_b32 s{S_IDX}, v1
                s_nop 3
                s_cmp_ge_u32 s{S_IDX}, {NPOOL}
                s_cbranch_scc1 {exit_label}
                s_and_b32 s{S_UT}, s{S_IDX}, {(1 << hb) - 1}
                s_lshr_b32 s{S_IDX}, s{S_IDX}, {hb}
                s_lshl_b32 s{S_NOFF}, s{S_UT}, 20
                """)
                if isA:
                    a(f"""
                    s_lshr_b32 s{S_NDST}, s{S_IDX}, 2
                    s_lshl_b32 s{S_NDST}, s{S_NDST}, 18
                    s_add_u32 s{S_NOFF}, s{S_NOFF}, s{S_NDST}
                    s_and_b32 s{S_NDST}, s{S_IDX}, 3
                    s_lshl_b32 s{S_NDST}, s{S_NDST}, 14
                    s_add_u32 s{S_NOFF}, s{S_NOFF}, s{S_NDST}
                    s_add_u32 s{S_NOFF}, s{S_NOFF}, {NKA * 4096}
                    s_lshl_b32 s{S_NDST}, s{S_UT}, {WG_SH + 2}
                    """)
                else:
                    a(f"""
                    s_lshl_b32 s{S_NDST}, s{S_IDX}, 14
                    s_add_u32 s{S_NOFF}, s{S_NOFF}, s{S_NDST}
                    s_add_u32 s{S_NOFF}, s{S_NOFF}, {NKB * 4096}
                    s_lshl_b32 s{S_NDST}, s{S_UT}, {WG_SH}
                    """)
                a(f"""
                s_lshl_b32 s{S_UT}, s{S_L}, 9
                s_add_u32 s{S_UT}, s{S_UT}, s{S_NDST}
                s_add_u32 s{S_UT}, s{S_UT}, {O_QX}
                v_and_b32 v6, 15, v2
                v_lshlrev_b32 v6, 5, v6
                """)
                for h in range(NH):
                    r = SL0 + 8 * h
                    a(f"buffer_load_dwordx4 v[{r}:{r+3}], v6, s[{SRD_W}:{SRD_W+3}], s{S_UT} offen sc1")
                    a(f"buffer_load_dwordx4 v[{r+4}:{r+7}], v6, s[{SRD_W}:{SRD_W+3}], s{S_UT} offen offset:16 sc1")
                    ops.append(("q", 2 * h))
                    ops.append(("q", 2 * h + 1))
                    if h < NH - 1:
                        a(f"s_add_u32 s{S_UT}, s{S_UT}, {WG_STRIDE}")
                a(f"s_add_u32 s{S_NDST}, s{S_NDST}, s{S_IDX}")

            def PSL(k):
                return SL0 + 4 * (PS0 + k % 16)

            def p_issue(k, offreg, tag):
                sr = SRD_PK if k < 16 else SRD_PV
                kk = k % 16
                if kk % 8 == 0:
                    a(f"s_add_u32 s{S_T3}, s{offreg}, {(kk // 8) * 8192}")
                t = kk % 8
                vo = VOFF0 if t < 4 else VOFF1
                sl = PSL(k)
                a(f"buffer_load_dwordx4 v[{sl}:{sl+3}], v{vo}, s[{sr}:{sr+3}], s{S_T3} offen offset:{(t%4)*1024} nt")
                ops.append((tag, k))

            for m in range(NK - D):
                if m == NK - 48:
                    claim()
                v_step(m)
            assert st["issued"] == p0 + 2 * NK, (st["issued"], p0 + 2 * NK)
            L_tail_b, L_pool, L_pool_b, L_join = uid("tailb"), uid("pool"), uid("poolb"), uid("join")
            snap = (list(free), dict(slot_of), list(ops), st["issued"])
            decide(L_tail_b)
            for j, m in enumerate(range(NK - D, NK)):
                v_step(m, pre=lambda j=j: p_issue(j, S_NOFF, "P"))
            static_done()
            a(f"""
            s_mov_b32 s{S_UOFF}, s{S_NOFF}
            s_mov_b32 s{S_UDST}, s{S_NDST}
            s_nop 7
            """)
            a.label(L_pool)
            ops[:] = [("q", i) for i in range(2 * NH)] + [("P", k) for k in range(D)]
            claim()
            wait_op(("q", 2 * NH - 1))
            lab_ok, lab_retry = uid("qok"), uid("qrt")
            a.label(lab_retry)
            a(f"v_and_b32 v6, v{SL0}, v{SL0+1}")
            for i in range(2, 8 * NH):
                a(f"v_and_b32 v6, v6, v{SL0+i}")
            a(f"""
            v_and_b32 v6, 1, v6
            v_cmp_eq_u32 vcc, 0, v6
            s_nop 1
            s_cbranch_vccz {lab_ok}
            s_sleep 2
            s_lshl_b32 s{S_UT}, s{S_L}, 9
            s_and_b32 s{S_T1}, s{S_UDST}, {(~(WG_STRIDE - 1)) & 0xffffffff:#x}
            s_add_u32 s{S_UT}, s{S_UT}, s{S_T1}
            s_add_u32 s{S_UT}, s{S_UT}, {O_QX}
            v_and_b32 v6, 15, v2
            v_lshlrev_b32 v6, 5, v6
            """)
            for h in range(NH):
                r = SL0 + 8 * h
                a(f"buffer_load_dwordx4 v[{r}:{r+3}], v6, s[{SRD_W}:{SRD_W+3}], s{S_UT} offen sc1")
                a(f"buffer_load_dwordx4 v[{r+4}:{r+7}], v6, s[{SRD_W}:{SRD_W+3}], s{S_UT} offen offset:16 sc1")
                if h < NH - 1:
                    a(f"s_add_u32 s{S_UT}, s{S_UT}, {WG_STRIDE}")
            a("s_waitcnt vmcnt(0)")
            budget_loop(a, lab_retry)
            a.label(lab_ok)
            for h in range(NH):
                for w in range(4):
                    r = SL0 + 8 * h + 2 * w
                    a(f"v_perm_b32 v{Q+4*h+w}, v{r+1}, v{r}, s{S_SELHI}")
            for k in range(16):
                p_issue(k + D, S_UOFF, "P")
                wait_op(("P", k))
                sl = PSL(k)
                if NH == 1:
                    tr = T + k
                    for w in range(4):
                        a(f"v_dot2_f32_bf16 v{tr}, v{sl+w}, v{Q+w}, {'0' if w == 0 else 'v%d' % tr}")
                    if k == 15:
                        reduce16(S)
                else:
                    tq = k % 4
                    for w in range(4):
                        for h in range(4):
                            tr = T + h * 4 + tq
                            a(f"v_dot2_f32_bf16 v{tr}, v{sl+w}, v{Q+4*h+w}, {'0' if w == 0 else 'v%d' % tr}")
                    if tq == 3:
                        reduce16(S + k // 4)
            NSU = 1 if NH == 1 else 4
            um, ul = 248, 249
            a(f"v_mov_b32 v{um}, v{S}")
            for i in range(1, NSU):
                a(f"v_max_f32 v{um}, v{um}, v{S+i}")
            wave_allreduce(a, um, t0, "v_max_f32", bits)
            a(f"v_mov_b32 v{ul}, 0")
            pa2 = 250
            if NH == 1:
                a(f"""
                v_lshrrev_b32 v{pa2}, 4, v2
                v_lshlrev_b32 v{pa2}, 4, v{pa2}
                v_bfe_u32 v{t0}, v2, 3, 1
                v_lshl_add_u32 v{pa2}, v{t0}, 6, v{pa2}
                v_and_b32 v{t0}, 7, v2
                v_lshl_add_u32 v{pa2}, v{t0}, 1, v{pa2}
                """)
            else:
                a(f"""
                v_lshrrev_b32 v{pa2}, 4, v2
                v_lshlrev_b32 v{pa2}, 4, v{pa2}
                v_bfe_u32 v{t0}, v2, 2, 2
                v_lshl_add_u32 v{pa2}, v{t0}, 6, v{pa2}
                v_and_b32 v{t0}, 3, v2
                v_lshl_add_u32 v{pa2}, v{t0}, 1, v{pa2}
                """)
            a(f"""
            s_lshl_b32 s{S_T1}, s{S_WAVE}, 11
            v_add_u32 v{pa2}, s{S_T1}, v{pa2}
            """)
            for i in range(NSU):
                a(f"v_sub_f32 v{t0}, v{S+i}, v{um}")
                a(f"v_mul_f32 v{t0}, s{S_LOG2E}, v{t0}")
                a(f"v_exp_f32 v{t0}, v{t0}")
                a(f"v_add_f32 v{ul}, v{ul}, v{t0}")
                off = L_P if NH == 1 else L_P + (i // 2) * 256 + (i % 2) * 8
                a(f"v_cvt_pk_bf16_f32 v{t0}, v{t0}, v{t0}")
                a(f"ds_write_b16 v{pa2}, v{t0} offset:{off}")
            wave_allreduce(a, ul, t0, "v_add_f32", bits)
            a("s_waitcnt lgkmcnt(0)")
            zero(a, ACC, 32)

            def pv_step(k, pre):
                pre()
                kk = k - 16
                tile, t = kk // 8, kk % 8
                if t == 0:
                    pb = PB + 4 * tile
                    a(f"ds_read_b128 v[{pb}:{pb+3}], v{pr} offset:{L_P + tile * 64 * NH}")
                if t % 2 == 1:
                    wait_op(("P", k))
                    perm_pair(a, PSL(k - 1), PSL(k), TMP, t // 2)
                    if t == 7:
                        a("s_waitcnt lgkmcnt(0)")
                        mfma8(a, TMP, PB + 4 * tile, ACC)

            def finalize():
                dump_addr()
                dump_acc(a, ACC, da, 90, L_PT)
                a(f"""
                s_and_b32 s{S_UT}, s{S_UDST}, {WG_STRIDE - 1}
                s_and_b32 s{S_T2}, s{S_UDST}, {(~(WG_STRIDE - 1)) & 0xffffffff:#x}
                s_lshl_b32 s88, s{S_L}, 7
                s_add_u32 s88, s88, s{S_T2}
                s_lshl_b32 s{S_IDX}, s{S_UT}, 3
                s_add_u32 s88, s88, s{S_IDX}
                s_add_u32 s88, s88, {O_PS}
                s_lshl_b32 s{S_UT}, s{S_UT}, 9
                s_add_u32 s{S_T2}, s{S_T2}, s{S_UT}
                s_lshl_b32 s{S_UT}, s{S_L}, 13
                s_add_u32 s{S_T2}, s{S_T2}, s{S_UT}
                s_add_u32 s{S_T2}, s{S_T2}, {O_PD}
                v_lshlrev_b32 v{t1}, 3, v2
                v_add_u32 v{da}, s{S_T1}, v{t1}
                s_waitcnt lgkmcnt(0)
                """)
                for h in range(NH):
                    a(f"ds_read_b64 v[{TMP+2*h}:{TMP+2*h+1}], v{da} offset:{L_PT + h*512}")
                a(f"""
                v_or_b32 v{um}, 1, v{um}
                v_or_b32 v{ul}, 1, v{ul}
                s_waitcnt lgkmcnt(0)
                """)
                for h in range(NH):
                    a(f"v_or_b32 v{TMP+2*h}, 1, v{TMP+2*h}")
                    a(f"v_or_b32 v{TMP+2*h+1}, 1, v{TMP+2*h+1}")
                    a(f"buffer_store_dwordx2 v[{TMP+2*h}:{TMP+2*h+1}], v{t1}, s[{SRD_W}:{SRD_W+3}], s{S_T2} offen sc1")
                    if h < NH - 1:
                        a(f"s_add_u32 s{S_T2}, s{S_T2}, {WG_STRIDE}")
                a(f"""
                v_bfe_u32 v{t1}, v2, 2, 2
                v_lshlrev_b32 v{t1}, {WG_SH}, v{t1}
                s_mov_b64 exec, {0x1111 if NH == 4 else 1}
                buffer_store_dwordx2 v[{um}:{um+1}], v{t1}, s[{SRD_W}:{SRD_W+3}], s88 offen sc1
                s_mov_b64 exec, -1
                """)

            for k in range(16, 32 - D):
                pv_step(k, lambda k=k: p_issue(k + D, S_UOFF, "P"))
            snap2 = list(ops)
            decide(L_pool_b)
            for j, k in enumerate(range(32 - D, 32)):
                pv_step(k, lambda j=j: p_issue(j, S_NOFF, "N"))
            finalize()
            a(f"""
            s_mov_b32 s{S_UOFF}, s{S_NOFF}
            s_mov_b32 s{S_UDST}, s{S_NDST}
            s_nop 7
            s_branch {L_pool}
            """)
            a.label(L_pool_b)
            ops[:] = [o for o in snap2 if o != "claim"]
            free[:] = list(range(RING))
            st["issued"] = p0 + 2 * NK
            for k in range(32 - D, 32):
                pv_step(k, lambda: do_issue(False))
            s3_keep = True
            finalize()
            after_state = (list(free), dict(slot_of), st["issued"])
            a(f"s_nop 7")
            a(f"s_branch {L_join}")
            a.label(L_tail_b)
            free[:], so, ops[:], st["issued"] = snap[0], snap[1], [o for o in snap[2] if o != "claim"], snap[3]
            slot_of.clear()
            slot_of.update(so)
            for m in range(NK - D, NK):
                v_step(m)
            static_done()
            a("s_nop 7")
            a.label(L_join)
            assert st["issued"] == after_state[2]
            assert sorted(free) == sorted(after_state[0]), (free, after_state[0])
            ops[:] = [p0 + 2 * NK + j for j in range(D)]
            nxt = st["issued"] % TOT
            mm = nxt if nxt < NKA else None
            assert mm is not None or True
            restore_t3()
        run_ahead(p0 + 2 * NK)
        stamp(a, V_ST_STREAM, li * 8 + 4, True)
        if isA:
            a(f"""
            s_cmp_eq_u32 s{S_ITER}, 1
            s_cselect_b32 s{SRD_E+2}, 0, s{SRD_E+2}
            s_cselect_b32 s{SRD_G+2}, 0, s{SRD_G+2}
            """)
    assert st["issued"] == TOT + D + NL + MDIR
    a(f"""
    s_add_u32 s{S_ITER}, s{S_ITER}, 1
    s_cmp_lt_u32 s{S_ITER}, 2
    s_nop 7
    s_cbranch_scc1 {loop}
    """)
    stamp_out(a, V_ST_STREAM)
    a("s_endpgm")


def gen_service(a):
    W = [64 + 4 * i for i in range(32)]
    TMP, ACC, PB = 192, 224, 48
    GR = [160 + i for i in range(32)] + [224 + i for i in range(32)]
    AOP = [TMP, W[0], W[8], W[16]]
    VZ, VX0, VX1 = 5, 6, 7
    W4 = 8
    SW = S_T0
    a(f"""
    s_setprio 2
    s_sub_u32 s{SW}, s{S_WAVE}, 4
    v_mov_b32 v{VZ}, 0
    v_and_b32 v3, 15, v2
    v_cmp_eq_u32 s[{S_M0}:{S_M0+1}], 0, v3
    v_cmp_eq_u32 s[{S_M1}:{S_M1+1}], 0, v2
    """)
    a(f"""
    v_lshrrev_b32 v14, 4, v2
    v_lshlrev_b32 v12, 13, v14
    v_lshl_add_u32 v12, v3, 4, v12
    v_lshlrev_b32 v13, 10, v14
    v_lshl_add_u32 v13, v3, 4, v13
    """)
    a(f"""
    s_lshl_b32 s{S_T1}, s{SW}, 8
    v_lshlrev_b32 v15, 4, v14
    v_add_u32 v15, s{S_T1}, v15
    v_lshlrev_b32 v16, 7, v14
    v_lshlrev_b32 v17, 3, v2
    """)
    a(f"s_lshl_b32 s{S_T1}, s{S_B}, {WG_SH + 5}")
    srd(a, SRD_B, P_WS, f"s{S_T1}", 32 * WG_STRIDE)
    a(f"""
    s_and_b32 s{S_WOFF}, s2, 31
    s_lshl_b32 s{S_WOFF}, s{S_WOFF}, {WG_SH}
    """)

    def issue_wq(L):
        isA = L % 2 == 0
        a(f"""
        s_and_b32 s{S_T1}, s2, 31
        s_lshl_b32 s{S_T1}, s{S_T1}, 8
        """)
        srd(a, SRD_C, P_AWQ if isA else P_BWQ, f"s{S_T1}", 512 * 8192 - 7936)
        a(f"s_lshl_b32 s{S_T2}, s{SW}, 20")
        for i in range(32):
            a(f"buffer_load_dwordx4 v[{W[i]}:{W[i]+3}], v12, s[{SRD_C}:{SRD_C+3}], s{S_T2} offen")
            if i < 31:
                a(f"s_add_u32 s{S_T2}, s{S_T2}, 32768")

    def issue_wo(L):
        isA = L % 2 == 0
        a(f"""
        s_and_b32 s{S_T1}, s2, 31
        s_lshl_b32 s{S_T1}, s{S_T1}, 17
        """)
        srd(a, SRD_C, P_AWO if isA else P_BWO, f"s{S_T1}", 131072)
        a(f"s_lshl_b32 s{S_T2}, s{SW}, 8")
        for i in range(32):
            a(f"buffer_load_dwordx4 v[{W[i]}:{W[i]+3}], v13, s[{SRD_C}:{SRD_C+3}], s{S_T2} offen")
            if i < 31:
                a(f"s_add_u32 s{S_T2}, s{S_T2}, 4096")

    def preperm():
        for tile in range(4):
            for u in range(4):
                n = tile * 8 + 2 * u + 1
                perm_pair(a, W[n - 1], W[n], AOP[tile], u)

    def gemv32():
        for t in range(4):
            a(f"ds_read_b128 v[{PB+4*t}:{PB+4*t+3}], v15 offset:{L_SP + t*64}")
        zero(a, ACC, 32)
        a("s_waitcnt lgkmcnt(0)")
        for tile in range(4):
            mfma8(a, AOP[tile], PB + 4 * tile, ACC)

    def write_p2(v0r, v1r, t):
        a(f"""
        v_cvt_pk_bf16_f32 v{t}, v{v0r}, v{v1r}
        v_lshrrev_b32 v{t+1}, 4, v2
        v_lshlrev_b32 v{t+1}, 6, v{t+1}
        v_and_b32 v{t+2}, 1, v2
        v_lshl_add_u32 v{t+1}, v{t+2}, 5, v{t+1}
        v_bfe_u32 v{t+2}, v2, 1, 3
        v_lshl_add_u32 v{t+1}, v{t+2}, 1, v{t+1}
        s_lshl_b32 s{S_T1}, s{SW}, 8
        v_add_u32 v{t+1}, s{S_T1}, v{t+1}
        ds_write_b16 v{t+1}, v{t} offset:{L_SP}
        ds_write_b16_d16_hi v{t+1}, v{t} offset:{L_SP + 16}
        s_waitcnt lgkmcnt(0)
        """)

    def part_gather(L):
        lab, done = uid("ps"), uid("psd")
        a(f"""
        v_and_b32 v18, 31, v2
        v_lshlrev_b32 v18, {WG_SH}, v18
        s_lshl_b32 s{S_T1}, s{SW}, 9
        s_add_u32 s{S_T1}, s{S_T1}, {O_PART + L*2048}
        s_nop 1
        """)
        a.label(lab)
        a(f"""
        buffer_load_dword v19, v18, s[{SRD_B}:{SRD_B+3}], s{S_T1} offen sc1
        s_waitcnt vmcnt(0)
        v_cmp_eq_u32 vcc, 0, v19
        s_nop 1
        s_cbranch_vccz {done}
        s_sleep 2
        """)
        budget_loop(a, lab)
        a.label(done)
        stamp(a, V_ST_SERV, (L + 1) * 10 + 0)
        lab, done = uid("pf"), uid("pfd")
        a.label(lab)
        a(f"s_mov_b32 s{S_T2}, s{S_T1}")
        for h in range(32):
            a(f"buffer_load_dwordx2 v[{GR[2*h]}:{GR[2*h+1]}], v17, s[{SRD_B}:{SRD_B+3}], s{S_T2} offen sc1")
            if h < 31:
                a(f"s_add_u32 s{S_T2}, s{S_T2}, {WG_STRIDE}")
        a("s_waitcnt vmcnt(0)")
        a(f"v_and_b32 v19, v{GR[0]}, v{GR[1]}")
        for i in range(2, 64):
            a(f"v_and_b32 v19, v19, v{GR[i]}")
        a(f"""
        v_and_b32 v19, 1, v19
        v_cmp_eq_u32 vcc, 0, v19
        s_nop 1
        s_cbranch_vccz {done}
        s_sleep 1
        """)
        budget_loop(a, lab)
        a.label(done)
        G = GR[0]
        for h in range(1, 32):
            a(f"v_add_f32 v{G}, v{G}, v{GR[2*h]}")
            a(f"v_add_f32 v{G+1}, v{G+1}, v{GR[2*h+1]}")
        bf16r(a, G, G)
        bf16r(a, G + 1, G + 1)
        a(f"v_add_f32 v{VX0}, v{VX0}, v{G}")
        a(f"v_add_f32 v{VX1}, v{VX1}, v{G+1}")
        bf16r(a, VX0, VX0)
        bf16r(a, VX1, VX1)

    if STAMP:
        a(f"v_mov_b32 v{V_ST_SERV}, 0")
        stamp(a, V_ST_SERV, 63)
    skipz = uid("nq0")
    a(f"""
    s_cmp_lg_u32 s{SW}, 3
    s_cbranch_scc1 {skipz}
    v_mov_b32 v24, 0
    v_mov_b32 v25, 0
    v_mov_b32 v26, 0
    v_mov_b32 v27, 0
    v_lshlrev_b32 v20, 4, v2
    s_add_u32 s{S_T2}, s{S_WOFF}, {O_QX}
    buffer_store_dwordx4 v[24:27], v20, s[{SRD_B}:{SRD_B+3}], s{S_T2} offen sc1
    """)
    a.label(skipz)
    a(f"s_lshl_b32 s{S_T1}, s{S_B}, 10")
    srd(a, SRD_A, P_AX, f"s{S_T1}", 1024)
    a(f"""
    v_subrev_u32 v18, 256, v0
    v_lshlrev_b32 v18, 2, v18
    buffer_load_dword v19, v18, s[{SRD_A}:{SRD_A+3}], 0 offen
    """)
    issue_wq(0)
    a(f"""
    s_waitcnt vmcnt(32)
    v_lshlrev_b32 v{VX0}, 16, v19
    v_and_b32 v{VX1}, 0xffff0000, v19
    """)
    skipz = uid("nq1")
    a(f"""
    s_cmp_lg_u32 s{SW}, 3
    s_cbranch_scc1 {skipz}
    """)
    srd(a, SRD_D, P_DBG, 0, 256)
    a(f"""
    s_lshl_b32 s{S_T1}, s{S_B}, 5
    v_mov_b32 v20, s{S_T1}
    v_mov_b32 v21, 1
    s_mov_b64 exec, 1
    buffer_atomic_add v21, v20, s[{SRD_D}:{SRD_D+3}], 0 offen sc1
    s_mov_b64 exec, -1
    s_nop 3
    """)
    a.label(skipz)

    for L in range(4):
        isA = L % 2 == 0
        Li = L // 2
        ep = L + 1
        if L > 0:
            part_gather(L - 1)
        stamp(a, V_ST_SERV, L * 10 + 1)
        a(f"""
        v_subrev_u32 v18, 256, v0
        v_lshlrev_b32 v18, 3, v18
        ds_write_b64 v18, v[{VX0}:{VX1}] offset:{L_XBUF}
        s_lshl_b32 s{S_T1}, s{SW}, 2
        v_mov_b32 v19, s{S_T1}
        s_waitcnt lgkmcnt(0)
        """)
        lds_set(a, F_X, ep, 19, 20)
        lds_wait(a, F_X, 4, ep, VZ, W4)
        a(f"""
        v_lshlrev_b32 v18, 5, v2
        ds_read_b128 v[24:27], v18 offset:{L_XBUF}
        ds_read_b128 v[28:31], v18 offset:{L_XBUF + 16}
        s_waitcnt lgkmcnt(0)
        v_add_f32 v20, v24, v25
        """)
        for i in range(26, 32):
            a(f"v_add_f32 v20, v20, v{i}")
        wave_allreduce(a, 20, 22, "v_add_f32")
        a("v_mul_f32 v20, 0x3b000000, v20")
        a("v_mov_b32 v21, 0")
        for i in range(24, 32):
            a(f"v_sub_f32 v22, v{i}, v20")
            a("v_fma_f32 v21, v22, v22, v21")
        wave_allreduce(a, 21, 22, "v_add_f32")
        a("v_mul_f32 v21, 0x3b000000, v21")
        bf16r(a, 20, 20)
        bf16r(a, 21, 21)
        a("v_add_f32 v21, 0x3727c5ac, v21")
        bf16r(a, 21, 21)
        a("v_sqrt_f32 v21, v21")
        bf16r(a, 21, 21)
        a("v_rcp_f32 v22, v21")
        for (xr, o) in ((VX0, 24), (VX1, 25)):
            a(f"v_sub_f32 v26, v{xr}, v20")
            bf16r(a, 26, 26)
            a(f"""
            v_mul_f32 v{o}, v26, v22
            v_fma_f32 v27, -v{o}, v21, v26
            v_fma_f32 v{o}, v27, v22, v{o}
            """)
        write_p2(24, 25, 28)
        stamp(a, V_ST_SERV, L * 10 + 2)
        if L == 0:
            a("s_waitcnt vmcnt(0)")
            preperm()
        stamp(a, V_ST_SERV, L * 10 + 3)
        gemv32()
        a(f"""
        s_lshl_b32 s{S_T1}, s{SW}, 9
        v_add_u32 v18, s{S_T1}, v16
        """)
        dump_acc(a, ACC, 18, S_M0, L_QRED)
        a(f"""
        s_lshl_b32 s{S_T1}, s{SW}, 2
        v_mov_b32 v19, s{S_T1}
        s_waitcnt lgkmcnt(0)
        """)
        lds_set(a, F_Q, ep, 19, 20)
        stamp(a, V_ST_SERV, L * 10 + 4)
        if L == 0:
            skipg, lab, done = uid("ng"), uid("gt"), uid("gtd")
            a(f"""
            s_cmp_lg_u32 s{SW}, 1
            s_cbranch_scc1 {skipg}
            """)
            srd(a, SRD_D, P_DBG, 0, 256)
            a(f"""
            s_lshl_b32 s{S_T1}, s{S_B}, 5
            v_mov_b32 v20, s{S_T1}
            s_nop 1
            """)
            a.label(lab)
            a(f"""
            buffer_load_dword v21, v20, s[{SRD_D}:{SRD_D+3}], 0 offen sc1
            s_waitcnt vmcnt(0)
            v_cmp_gt_u32 vcc, 32, v21
            s_nop 1
            s_cbranch_vccz {done}
            s_sleep 2
            """)
            budget_loop(a, lab)
            a.label(done)
            lds_set(a, F_G, 1, VZ, 20)
            a("s_nop 3")
            a.label(skipg)
        skip = uid("nq")
        a(f"""
        s_cmp_lg_u32 s{SW}, 0
        s_cbranch_scc1 {skip}
        """)
        lds_wait(a, F_Q, 4, ep, VZ, W4)
        for w in range(4):
            a(f"ds_read_b64 v[{24+2*w}:{25+2*w}], v17 offset:{L_QRED + w*512}")
        a("s_waitcnt lgkmcnt(0)")
        for w in range(1, 4):
            a(f"v_add_f32 v24, v24, v{24+2*w}")
            a(f"v_add_f32 v25, v25, v{25+2*w}")
        a("v_lshlrev_b32 v18, 2, v2")
        if not isA:
            a(f"""
            v_cvt_pk_bf16_f32 v26, v24, v25
            ds_write_b32 v18, v26 offset:{L_QAREA}
            """)
            if POOL_B:
                a(f"""
                v_lshlrev_b32 v24, 16, v26
                v_and_b32 v25, 0xffff0000, v26
                v_or_b32 v24, 1, v24
                v_or_b32 v25, 1, v25
                s_add_u32 s{S_T1}, s{S_WOFF}, {O_QX + L*512}
                buffer_store_dwordx2 v[24:25], v17, s[{SRD_B}:{SRD_B+3}], s{S_T1} offen sc1
                """)
        else:
            bf16r(a, 24, 24)
            bf16r(a, 25, 25)
            a(f"""
            v_or_b32 v24, 1, v24
            v_or_b32 v25, 1, v25
            s_add_u32 s{S_T1}, s{S_WOFF}, {O_QX + L*512}
            buffer_store_dwordx2 v[24:25], v17, s[{SRD_B}:{SRD_B+3}], s{S_T1} offen sc1
            """)
            if L == 0:
                lds_wait(a, F_G, 1, 1, VZ, W4)
            lab, done = uid("qx"), uid("qxd")
            a(f"""
            s_and_b32 s{S_T1}, s{S_WOFF}, {(~(4*WG_STRIDE - 1)) & 0xffffffff:#x}
            s_add_u32 s{S_T1}, s{S_T1}, {O_QX + L*512}
            s_nop 1
            """)
            a.label(lab)
            a(f"s_mov_b32 s{S_T2}, s{S_T1}")
            for h in range(4):
                a(f"buffer_load_dwordx2 v[{24+2*h}:{25+2*h}], v17, s[{SRD_B}:{SRD_B+3}], s{S_T2} offen sc1")
                if h < 3:
                    a(f"s_add_u32 s{S_T2}, s{S_T2}, {WG_STRIDE}")
            if L == 0:
                pass
            a("s_waitcnt vmcnt(0)")
            a("v_and_b32 v19, v24, v25")
            for i in range(26, 32):
                a(f"v_and_b32 v19, v19, v{i}")
            a(f"""
            v_and_b32 v19, 1, v19
            v_cmp_eq_u32 vcc, 0, v19
            s_nop 1
            s_cbranch_vccz {done}
            s_sleep 1
            """)
            budget_loop(a, lab)
            a.label(done)
            for h in range(4):
                a(f"v_perm_b32 v20, v{25+2*h}, v{24+2*h}, s{S_SELHI}")
                a(f"ds_write_b32 v18, v20 offset:{L_QAREA + h*256}")
        a("s_waitcnt lgkmcnt(0)")
        lds_set(a, F_QRDY, ep, VZ, 20)
        stamp(a, V_ST_SERV, L * 10 + 5)
        a("s_nop 3")
        a.label(skip)
        issue_wo(L)
        a("s_waitcnt vmcnt(0)")
        preperm()
        if L == 0:
            skipg, lab, done = uid("ng"), uid("gt"), uid("gtd")
            a(f"""
            s_cmp_lg_u32 s{SW}, 2
            s_cbranch_scc1 {skipg}
            """)
            srd(a, SRD_D, P_DBG, 0, 256)
            a(f"""
            s_lshl_b32 s{S_T1}, s{S_B}, 5
            v_mov_b32 v20, s{S_T1}
            s_nop 1
            """)
            a.label(lab)
            a(f"""
            buffer_load_dword v21, v20, s[{SRD_D}:{SRD_D+3}], 0 offen offset:4 sc1
            s_waitcnt vmcnt(0)
            v_cmp_gt_u32 vcc, 32, v21
            s_nop 1
            s_cbranch_vccz {done}
            s_sleep 8
            """)
            budget_loop(a, lab)
            a.label(done)
            lds_set(a, F_G2, 1, VZ, 20)
            a("s_nop 3")
            a.label(skipg)
            lds_wait(a, F_G2, 1, 1, VZ, W4)
        lds_wait(a, F_E1, 4, ep, VZ, W4)
        stamp(a, V_ST_SERV, L * 10 + 6)
        if not isA:
            for w in range(NSW):
                a(f"ds_read_b64 v[{24+2*w}:{25+2*w}], v17 offset:{L_ORED + w*2048}")
            a("s_waitcnt lgkmcnt(0)")
            for w in range(1, NSW):
                a(f"v_add_f32 v24, v24, v{24+2*w}")
                a(f"v_add_f32 v25, v25, v{25+2*w}")
        else:
            a(f"""
            s_lshl_b32 s{S_T1}, s{SW}, 9
            v_add_u32 v18, s{S_T1}, v17
            s_lshl_b32 s{S_T1}, s{SW}, 3
            v_mov_b32 v19, s{S_T1}
            """)
            for w in range(NSW):
                a(f"ds_read_b64 v[{24+2*w}:{25+2*w}], v18 offset:{L_ORED + w*2048}")
            a(f"ds_read_b64 v[32:33], v19 offset:{L_STAT}")
            a("s_waitcnt lgkmcnt(0)")
            for w in range(1, NSW):
                a(f"v_add_f32 v24, v24, v{24+2*w}")
                a(f"v_add_f32 v25, v25, v{25+2*w}")
            a(f"""
            v_or_b32 v24, 1, v24
            v_or_b32 v25, 1, v25
            v_or_b32 v32, 1, v32
            v_or_b32 v33, 1, v33
            s_and_b32 s{S_T1}, s{S_WOFF}, {(~(4*WG_STRIDE - 1)) & 0xffffffff:#x}
            s_lshl_b32 s{S_T2}, s{SW}, {WG_SH}
            s_add_u32 s{S_T1}, s{S_T1}, s{S_T2}
            s_and_b32 s{S_T2}, s2, 3
            s_lshl_b32 s{S_T2}, s{S_T2}, 10
            s_add_u32 s{S_T1}, s{S_T1}, s{S_T2}
            s_add_u32 s{S_T1}, s{S_T1}, {O_OX + Li*4096}
            buffer_store_dwordx2 v[24:25], v17, s[{SRD_B}:{SRD_B+3}], s{S_T1} offen sc1
            s_mov_b64 exec, s[{S_M1}:{S_M1+1}]
            buffer_store_dwordx2 v[32:33], v{VZ}, s[{SRD_B}:{SRD_B+3}], s{S_T1} offen offset:512 sc1
            s_mov_b64 exec, -1
            s_add_u32 s{S_T1}, s{S_WOFF}, {O_OX + Li*4096}
            s_nop 1
            """)
            lab, done = uid("ox"), uid("oxd")
            a.label(lab)
            for s in range(4):
                a(f"buffer_load_dwordx2 v[{24+2*s}:{25+2*s}], v17, s[{SRD_B}:{SRD_B+3}], s{S_T1} offen offset:{s*1024} sc1")
                a(f"buffer_load_dwordx2 v[{32+2*s}:{33+2*s}], v{VZ}, s[{SRD_B}:{SRD_B+3}], s{S_T1} offen offset:{s*1024+512} sc1")
            a("s_waitcnt vmcnt(0)")
            a("v_and_b32 v19, v24, v25")
            for i in range(26, 40):
                a(f"v_and_b32 v19, v19, v{i}")
            a(f"""
            v_and_b32 v19, 1, v19
            v_cmp_eq_u32 vcc, 0, v19
            s_nop 1
            s_cbranch_vccz {done}
            s_sleep 1
            """)
            budget_loop(a, lab)
            a.label(done)
        pooled = POOL_A if isA else POOL_B
        NSP = 4 if isA else 1
        if (not isA) and pooled:
            a(f"""
            ds_read_b64 v[32:33], v{VZ} offset:{L_STAT}
            s_waitcnt lgkmcnt(0)
            """)
        if pooled:
            lab, done = uid("pg"), uid("pgd")
            a(f"""
            v_and_b32 v18, 15, v2
            v_lshlrev_b32 v18, 3, v18
            s_add_u32 s{S_T1}, s{S_WOFF}, {O_PD + L*8192}
            s_add_u32 s{S_T2}, s{S_WOFF}, {O_PS + L*128}
            s_nop 1
            """)
            a.label(lab)
            a(f"buffer_load_dwordx2 v[40:41], v18, s[{SRD_B}:{SRD_B+3}], s{S_T2} offen sc1")
            for u in range(NU):
                if u == 8:
                    a(f"s_add_u32 s{S_T3}, s{S_T1}, 4096")
                a(f"buffer_load_dwordx2 v[{GR[2*u]}:{GR[2*u+1]}], v17, s[{SRD_B}:{SRD_B+3}], s{S_T1 if u < 8 else S_T3} offen offset:{(u%8)*512} sc1")
            a("s_waitcnt vmcnt(0)")
            a("v_and_b32 v19, v40, v41")
            for i in range(2 * NU):
                a(f"v_and_b32 v19, v19, v{GR[i]}")
            a(f"""
            v_and_b32 v19, 1, v19
            v_cmp_eq_u32 vcc, 0, v19
            s_nop 1
            s_cbranch_vccz {done}
            s_sleep 4
            """)
            budget_loop(a, lab)
            a.label(done)
        if isA or pooled:
            if pooled:
                a("v_mov_b32 v44, v40")
                wave_allreduce(a, 44, 45, "v_max_f32", (0, 1, 2, 3))
                a("v_max_f32 v44, v44, v32")
            else:
                a("v_mov_b32 v44, v32")
            for i in range(1, NSP):
                a(f"v_max_f32 v44, v44, v{32+2*i}")
            if pooled:
                a(f"""
                v_sub_f32 v42, v40, v44
                v_mul_f32 v42, s{S_LOG2E}, v42
                v_exp_f32 v42, v42
                v_mul_f32 v43, v42, v41
                """)
                wave_allreduce(a, 43, 45, "v_add_f32", (0, 1, 2, 3))
            else:
                a("v_mov_b32 v43, 0")
            a("v_mov_b32 v20, 0")
            a("v_mov_b32 v21, 0")
            for i in range(NSP):
                a(f"""
                v_sub_f32 v45, v{32+2*i}, v44
                v_mul_f32 v45, s{S_LOG2E}, v45
                v_exp_f32 v45, v45
                v_fma_f32 v43, v45, v{33+2*i}, v43
                v_fma_f32 v20, v45, v{24+2*i}, v20
                v_fma_f32 v21, v45, v{25+2*i}, v21
                """)
            if pooled:
                for u in range(NU):
                    a(f"v_readlane_b32 s{S_T3}, v42, {u}")
                    a(f"v_fma_f32 v20, s{S_T3}, v{GR[2*u]}, v20")
                    a(f"v_fma_f32 v21, s{S_T3}, v{GR[2*u+1]}, v21")
            a(f"""
            v_rcp_f32 v43, v43
            v_mul_f32 v24, v20, v43
            v_mul_f32 v25, v21, v43
            """)
        stamp(a, V_ST_SERV, L * 10 + 7)
        write_p2(24, 25, 28)
        gemv32()
        a(f"""
        s_lshl_b32 s{S_T1}, s{SW}, 9
        v_add_u32 v18, s{S_T1}, v16
        """)
        dump_acc(a, ACC, 18, S_M0, L_TR)
        a(f"""
        v_add_u32 v18, s{S_T1}, v17
        s_waitcnt lgkmcnt(0)
        ds_read_b64 v[24:25], v18 offset:{L_TR}
        s_add_u32 s{S_T1}, s{S_T1}, s{S_WOFF}
        s_add_u32 s{S_T1}, s{S_T1}, {O_PART + L*2048}
        s_waitcnt lgkmcnt(0)
        v_or_b32 v24, 1, v24
        v_or_b32 v25, 1, v25
        buffer_store_dwordx2 v[24:25], v17, s[{SRD_B}:{SRD_B+3}], s{S_T1} offen sc1
        """)
        stamp(a, V_ST_SERV, L * 10 + 8)
        if L < 3:
            issue_wq(L + 1)
            a("s_waitcnt vmcnt(0)")
            preperm()
    if STAMP:
        lab = uid("fin")
        a(f"""
        s_cmp_eq_u32 s{S_WOFF}, 0
        s_cbranch_scc1 {lab}
        """)
        stamp_out(a, V_ST_SERV)
        a("s_endpgm")
        a.label(lab)
    a(f"""
    s_cmp_lg_u32 s{S_WOFF}, 0
    s_cbranch_scc1 L_end
    """)
    part_gather(3)
    a(f"s_lshl_b32 s{S_T1}, s{S_B}, 10")
    srd(a, SRD_A, P_OUT, f"s{S_T1}", 1024)
    a(f"""
    v_subrev_u32 v18, 256, v0
    v_lshlrev_b32 v18, 2, v18
    v_perm_b32 v19, v{VX1}, v{VX0}, s{S_SELHI}
    buffer_store_dword v19, v18, s[{SRD_A}:{SRD_A+3}], 0 offen
    """)
    stamp(a, V_ST_SERV, 51)
    stamp_out(a, V_ST_SERV)
    a("s_endpgm")


def main():
    a = Asm()
    name = NAME + "_kernel"
    a(f"""
    s_cmp_ge_u32 s2, 256
    s_cbranch_scc1 L_end
    s_load_dwordx16 s[16:31], s[0:1], 0
    s_load_dwordx8 s[32:39], s[0:1], 64
    s_load_dwordx2 s[40:41], s[0:1], 96
    v_lshrrev_b32 v1, 6, v0
    v_and_b32 v2, 63, v0
    v_readfirstlane_b32 s{S_WAVE}, v1
    s_mov_b32 s{S_SELLO}, 0x05040100
    s_mov_b32 s{S_SELHI}, 0x07060302
    s_mov_b32 s{S_LOG2E}, {LOG2E:#x}
    s_mov_b32 s{S_SCALE}, {SCALE:#x}
    s_mov_b32 s{S_BUDGET}, 400000
    s_lshr_b32 s{S_B}, s2, 5
    v_and_b32 v3, 31, v2
    v_lshlrev_b32 v3, 2, v3
    v_mov_b32 v4, 0
    ds_write_b32 v3, v4
    s_waitcnt lgkmcnt(0)
    s_barrier
    s_cmp_ge_u32 s{S_WAVE}, 4
    s_cbranch_scc1 L_service
    """)
    gen_stream(a)
    a.label("L_service")
    gen_service(a)
    a.label("L_end")
    a("s_endpgm")
    out = HDR
    out += f"; @launch grid=(256,1,1) block=(512,1,1) lds={LDS_TOTAL}\n"
    out += '.amdgcn_target "amdgcn-amd-amdhsa--gfx950"\n.text\n'
    out += f".globl {name}\n.p2align 8\n.type {name},@function\n{name}:\n" + a.text()
    out += '.section .rodata,"a"\n.p2align 6\n'
    out += f""".amdhsa_kernel {name}
  .amdhsa_next_free_vgpr 256
  .amdhsa_next_free_sgpr 102
  .amdhsa_accum_offset 256
  .amdhsa_group_segment_fixed_size 0
  .amdhsa_kernarg_size 104
  .amdhsa_user_sgpr_count 2
  .amdhsa_user_sgpr_kernarg_segment_ptr 1
  .amdhsa_system_sgpr_workgroup_id_x 1
  .amdhsa_float_denorm_mode_32 3
.end_amdhsa_kernel
"""
    path = sys.argv[1] if len(sys.argv) > 1 else f"cdna_kernels/{NAME}.s"
    open(path, "w").write(out)
    print("wrote", path, len(out), "bytes")


main()
```
